```python
import torch

def _softmax(x, axis=-1):
    return torch.softmax(x, dim=axis)
def _gelu(x):
    return torch.nn.functional.gelu(x, approximate="tanh")
def _silu(x):
    return torch.nn.functional.silu(x)
def _sigmoid(x):
    return torch.sigmoid(x)
def _layernorm(x, axis=-1, eps=1e-5):
    m = x.mean(dim=axis, keepdim=True)
    v = x.var(dim=axis, keepdim=True, unbiased=False)
    return (x - m) / torch.sqrt(v + eps)
def _scatter_add(tgt, idx, src, axis=0):
    return tgt.clone().index_add_(axis, idx, src)
def _segment_sum(src, seg, n):
    out = torch.zeros((n,) + src.shape[1:], dtype=src.dtype)
    return out.index_add_(0, seg, src)
def _pad(x, pw):
    flat = tuple(v for pair in reversed(pw) for v in pair)
    return torch.nn.functional.pad(x, flat)

kernel_name = 'recurrent_scan__linear_attn_block__glu_gated_glu__prompt'

def setup_inputs():

    _w = (lambda a: (lambda t: t.to(torch.bfloat16) if t.is_floating_point() else t)(torch.as_tensor(a)))
    def _A_setup():
        B, S, D = 1, 2048, 640
        return {
            "x": _w((lambda *s: torch.randn(*s, dtype=torch.bfloat16) * 0.05)(B, S, D)),
            "wqkv": _w((lambda *s: torch.randn(*s, dtype=torch.bfloat16) * 0.05)(D, 3 * D)),
            "wo": _w((lambda *s: torch.randn(*s, dtype=torch.bfloat16) * 0.05)(D, D)),
        }
    _A_in = _A_setup()

    def _B_setup():
        B, S, D, F = 1, 2048, 640, 1728
        return {
            "x": _w((lambda *s: torch.randn(*s, dtype=torch.bfloat16) * 0.05)(B, S, D)),
            "w_gate": _w((lambda *s: torch.randn(*s, dtype=torch.bfloat16) * 0.05)(D, F)),
            "w_up": _w((lambda *s: torch.randn(*s, dtype=torch.bfloat16) * 0.05)(D, F)),
            "w_down": _w((lambda *s: torch.randn(*s, dtype=torch.bfloat16) * 0.05)(F, D)),
        }
    _B_in = _B_setup()

    return {
        "A_x": _A_in["x"],
        "A_wqkv": _A_in["wqkv"],
        "A_wo": _A_in["wo"],
        "B_x": _B_in["x"],
        "B_w_gate": _B_in["w_gate"],
        "B_w_up": _B_in["w_up"],
        "B_w_down": _B_in["w_down"],
    }

def reference(A_x, A_wqkv, A_wo, B_x, B_w_gate, B_w_up, B_w_down):
    def _A_ref(x, wqkv, wo):
        B, S, D = x.shape
        H = 32; Dh = D // H
        qkv = (lambda x, *d: x.permute(*d))((x @ wqkv).reshape(B, S, 3, H, Dh), 2, 0, 3, 1, 4)
        q, k, v = qkv[0], qkv[1], qkv[2]
        phi = lambda t: torch.where(t > 0, t + 1, torch.exp(t)) + 1e-6
        pq, pk = phi(q), phi(k)
        kv = torch.einsum("bhsd,bhse->bhde", pk, v)
        z = torch.einsum("bhsd->bhd", pk)
        num = torch.einsum("bhqd,bhde->bhqe", pq, kv)
        den = torch.einsum("bhqd,bhd->bhq", pq, z)[..., None] + 1e-6
        o = num / den
        return (lambda x, *d: x.permute(*d))(o, 0, 2, 1, 3).reshape(B, S, D) @ wo

    def _B_ref(x, w_gate, w_up, w_down):
        g = torch.einsum("bsd,df->bsf", x, w_gate)
        u = torch.einsum("bsd,df->bsf", x, w_up)
        h = _sigmoid(g) * u
        return torch.einsum("bsf,fd->bsd", h, w_down)

    x = A_x
    xn = _layernorm(x, axis=-1)
    s = _A_ref(xn, A_wqkv, A_wo)
    g = _silu(_B_ref(xn, B_w_gate, B_w_up, B_w_down))
    return x + s * g
```

```python
import sys

NAME = "recurrent_scan__linear_attn_block__glu_gated_glu__prompt"
S, D, H, DH, F = 2048, 640, 32, 20, 1728

WS_XN = 0
WS_PQ = WS_XN + S * D * 2
WS_H = WS_PQ + S * D * 2
WS_KVP = WS_H + S * F * 2
WS_O = WS_KVP + 16 * 32 * 21 * 20 * 4
WS_G = WS_O + S * D * 2
WS_END = WS_G + S * D * 2

LOG2E = 0x3fb8aa3b
EPS6 = 0x358637bd
EPS5 = 0x3727c5ac

out = []


def E(s=""):
    out.append("    " + s if s and not s.endswith(":") else s)


def nop(n):
    while n > 0:
        k = min(n, 16)
        E(f"s_nop {k-1}")
        n -= k


def load_ptrs():
    E("s_load_dwordx16 s[16:31], s[0:1], 0")
    E("s_load_dwordx4 s[32:35], s[0:1], 64")


def srd(d, base, nbytes, off=0):
    if off:
        E(f"s_add_u32 s{d}, s{base}, {off}")
        E(f"s_addc_u32 s{d+1}, s{base+1}, 0")
    else:
        E(f"s_mov_b32 s{d}, s{base}")
        E(f"s_mov_b32 s{d+1}, s{base+1}")
    E(f"s_and_b32 s{d+1}, s{d+1}, 0xffff")
    E(f"s_mov_b32 s{d+2}, {nbytes}")
    E(f"s_mov_b32 s{d+3}, 0x00020000")


P_X, P_WQKV, P_WO, P_WG, P_WU, P_WD, P_OUT, P_WS = 16, 18, 20, 24, 26, 28, 30, 34


def bf16r2(a, b, tmp):
    E(f"v_cvt_pk_bf16_f32 v{tmp}, v{a}, v{b}")
    E(f"v_lshlrev_b32 v{a}, 16, v{tmp}")
    E(f"v_and_b32 v{b}, 0xffff0000, v{tmp}")


def kernel_begin(name):
    E(f".globl {name}")
    E(".p2align 8")
    E(f".type {name},@function")
    E(f"{name}:")


def kernel_desc(name, nvgpr, nsgpr=100):
    acc = (nvgpr + 3) // 4 * 4
    return f""".p2align 6
.amdhsa_kernel {name}
  .amdhsa_next_free_vgpr {nvgpr}
  .amdhsa_next_free_sgpr {nsgpr}
  .amdhsa_accum_offset {acc}
  .amdhsa_group_segment_fixed_size 0
  .amdhsa_kernarg_size 80
  .amdhsa_user_sgpr_count 2
  .amdhsa_user_sgpr_kernarg_segment_ptr 1
  .amdhsa_system_sgpr_workgroup_id_x 1
.end_amdhsa_kernel
"""


def wave_sum(v, t):
    for off in (0x041F, 0x081F, 0x101F, 0x201F, 0x401F):
        E(f"ds_swizzle_b32 v{t}, v{v} offset:{off}")
        E("s_waitcnt lgkmcnt(0)")
        E(f"v_add_f32 v{v}, v{v}, v{t}")
    nop(1)
    E(f"v_readlane_b32 s4, v{v}, 32")
    E(f"v_readlane_b32 s5, v{v}, 0")
    nop(2)
    E(f"v_mov_b32 v{v}, s4")
    E(f"v_add_f32 v{v}, s5, v{v}")


def gen_ln():
    name = "ln_kernel"
    kernel_begin(name)
    E("s_cmp_ge_u32 s2, 512")
    E("s_cbranch_scc1 ln_done")
    load_ptrs()
    E("v_lshrrev_b32 v1, 6, v0")
    E("v_and_b32 v2, 63, v0")
    E("v_lshl_add_u32 v1, s2, 2, v1")
    E("v_mul_u32_u24 v1, 1280, v1")
    E("v_lshl_add_u32 v1, v2, 2, v1")
    E("s_waitcnt lgkmcnt(0)")
    srd(36, P_X, S * D * 2)
    srd(40, P_WS, S * D * 2, WS_XN)
    for j in range(5):
        E(f"buffer_load_dword v{10+j}, v1, s[36:39], 0 offen offset:{256*j}")
    E("s_waitcnt vmcnt(0)")
    for j in range(5):
        E(f"v_lshlrev_b32 v{20+2*j}, 16, v{10+j}")
        E(f"v_and_b32 v{21+2*j}, 0xffff0000, v{10+j}")
    E("v_add_f32 v3, v20, v21")
    for j in range(2, 10):
        E(f"v_add_f32 v3, v3, v{20+j}")
    wave_sum(3, 4)
    E("v_mul_f32 v3, 0x3acccccd, v3")
    E("v_mov_b32 v5, 0")
    for j in range(10):
        E(f"v_sub_f32 v6, v{20+j}, v3")
        E("v_fmac_f32 v5, v6, v6")
    wave_sum(5, 6)
    E("v_mul_f32 v5, 0x3acccccd, v5")
    bf16r2(3, 5, 7)
    E(f"v_add_f32 v5, {hex(EPS5)}, v5")
    E("v_mov_b32 v6, 0")
    bf16r2(5, 6, 7)
    E("v_sqrt_f32 v5, v5")
    nop(1)
    bf16r2(5, 6, 7)
    E("v_rcp_f32 v8, v5")
    nop(1)
    for j in range(0, 10, 2):
        a, b = 20 + j, 21 + j
        E(f"v_sub_f32 v{a}, v{a}, v3")
        E(f"v_sub_f32 v{b}, v{b}, v3")
        bf16r2(a, b, 7)
        for r in (a, b):
            E(f"v_mul_f32 v9, v{r}, v8")
            E(f"v_fma_f32 v6, -v9, v5, v{r}")
            E(f"v_fma_f32 v{r}, v6, v8, v9")
        E(f"v_cvt_pk_bf16_f32 v{10+j//2}, v{a}, v{b}")
    for j in range(5):
        E(f"buffer_store_dword v{10+j}, v1, s[40:43], 0 offen offset:{256*j}")
    E("ln_done:")
    E("s_endpgm")
    return name, kernel_desc(name, 32)


STG1 = 40960


def gen_g1():
    name = "g1_kernel"
    kernel_begin(name)
    NWG = 480
    E(f"s_cmp_ge_u32 s2, {NWG}")
    E("s_cbranch_scc1 g1_done")
    load_ptrs()
    E("s_and_b32 s6, s2, 15")
    E("s_lshr_b32 s7, s2, 4")
    E("v_lshrrev_b32 v1, 6, v0")
    nop(1)
    E("v_readfirstlane_b32 s8, v1")
    E("v_and_b32 v2, 63, v0")
    E("v_and_b32 v3, 15, v2")
    E("v_lshrrev_b32 v4, 4, v2")
    E("s_waitcnt lgkmcnt(0)")
    srd(36, P_WS, S * D * 2, WS_XN)
    E("s_lshl_b32 s9, s8, 5")
    E("v_lshrrev_b32 v5, 3, v2")
    E("v_add_u32 v5, s9, v5")
    E("v_and_b32 v6, 7, v2")
    for i in range(4):
        E(f"v_add_u32 v7, {8*i}, v5")
        E("v_bfe_u32 v8, v7, 1, 3")
        E("v_xor_b32 v8, v8, v6")
        E("v_mul_u32_u24 v7, 1280, v7")
        E(f"v_lshl_add_u32 v{10+i}, v8, 4, v7")
    E("s_mul_i32 s10, s6, 163840")
    E("s_lshr_b32 s11, s8, 1")
    E("s_and_b32 s12, s8, 1")
    E("s_lshl_b32 s13, s11, 6")
    E("v_add_u32 v5, s13, v3")
    E("v_bfe_u32 v6, v5, 1, 3")
    E("v_xor_b32 v6, v6, v4")
    E("v_lshlrev_b32 v5, 7, v5")
    E("v_lshl_add_u32 v20, v6, 4, v5")
    E("v_xor_b32 v21, 64, v20")
    E("s_cmp_lt_u32 s7, 12")
    E("s_cbranch_scc1 g1_qkv")
    E("s_branch g1_gu")

    for typ in ("qkv", "gu"):
        E(f"g1_{typ}:")
        gu = typ == "gu"
        NT = 6 if gu else 5
        half = 1
        E("s_lshr_b32 s14, s8, 1")
        if gu:
            E("s_sub_u32 s15, s7, 12")
            E("s_mul_i32 s15, s15, 192")
            E("s_cmp_eq_u32 s14, 0")
            E(f"s_cselect_b32 s40, s{P_WG}, s{P_WU}")
            E(f"s_cselect_b32 s41, s{P_WG+1}, s{P_WU+1}")
            E("s_and_b32 s41, s41, 0xffff")
            E(f"s_mov_b32 s42, {D*F*2}")
            E("s_mov_b32 s43, 0x00020000")
            RS = F * 2
            NV = 96
        else:
            srd(40, P_WQKV, D * 3 * D * 2)
            RS = 3 * D * 2
            NV = 80
            E("s_cmp_lt_u32 s7, 8")
            E("s_cbranch_scc0 g1_qcol")
            E("s_mul_i32 s15, s7, 80")
            E("s_mul_i32 s4, s14, 640")
            E("s_add_u32 s15, s15, s4")
            E("s_add_u32 s15, s15, 640")
            E("s_branch g1_colok")
            E("g1_qcol:")
            E("s_sub_u32 s15, s7, 8")
            E("s_mul_i32 s15, s15, 160")
            E("s_mul_i32 s4, s14, 80")
            E("s_add_u32 s15, s15, s4")
            E("g1_colok:")
            E("s_lshl_b32 s15, s15, 1")
        E("s_and_b32 s4, s8, 1")
        E("s_mul_i32 s4, s4, 384")
        for i in range(6):
            E(f"v_add_u32 v5, s4, v2")
            if i:
                E(f"v_add_u32 v5, {64*i}, v5")
            E("v_mul_u32_u24 v6, 43691, v5")
            E("v_lshrrev_b32 v6, 19, v6")
            E("v_mul_u32_u24 v7, 12, v6")
            E("v_sub_u32 v7, v5, v7")
            E("v_bfe_u32 v8, v6, 3, 1")
            E("v_lshlrev_b32 v8, 1, v8")
            E("v_xor_b32 v7, v7, v8")
            E(f"v_mul_u32_u24 v6, {RS}, v6" if RS < (1 << 24) else "BAD")
            E("v_lshl_add_u32 v6, v7, 4, v6")
            E(f"v_add_u32 v{14+i}, s15, v6")
            if NV < 96:
                E(f"v_cmp_gt_u32 vcc, {NV//8}, v7")
                nop(2)
                E(f"v_cndmask_b32 v{14+i}, v22, v{14+i}, vcc") if False else None
                E("v_mov_b32 v9, 0x7ff00000")
                E(f"v_cndmask_b32 v{14+i}, v9, v{14+i}, vcc")
        E("s_lshl_b32 s44, s8, 12")
        E("s_mul_i32 s45, s14, 12288")
        E("s_mul_i32 s4, s4, 16")
        E("s_add_u32 s45, s45, s4")
        E("s_add_u32 s45, s45, 16384")
        E("s_mov_b32 s46, 0")
        E("v_lshlrev_b32 v5, 3, v4")
        E("v_lshrrev_b32 v6, 2, v3")
        E("v_add_u32 v5, v5, v6")
        E("v_mul_u32_u24 v5, 192, v5")
        E("v_and_b32 v6, 3, v3")
        E("v_lshl_add_u32 v5, v6, 3, v5")
        E("v_add_u32 v5, 16384, v5")
        E("v_and_b32 v6, 1, v4")
        E("v_lshlrev_b32 v6, 5, v6")
        if gu:
            E("s_mul_i32 s4, s12, 96")
        else:
            E("s_mul_i32 s4, s12, 12288")
        E("v_add_u32 v5, s4, v5")
        E("v_add_u32 v22, v5, v6")
        E("v_sub_u32 v23, v5, v6")

        tiles = []
        if gu:
            E("s_cmp_eq_u32 s12, 1")
            E("s_cbranch_scc0 g1_noswap")
            E("v_mov_b32 v5, v22")
            E("v_mov_b32 v22, v23")
            E("v_mov_b32 v23, v5")
            E("g1_noswap:")
            for sub in range(2):
                for t in range(3):
                    tiles.append((22 + (t & 1), sub * 12288 + t * 32))
        else:
            for t in range(5):
                tiles.append((22 + (t & 1), t * 32))

        ACC = 100
        XF = [30, 46]
        WF = [200, 224]
        for r in range(NT * 16):
            E(f"v_mov_b32 v{ACC+r}, 0")

        def dma(buf):
            boff = buf * STG1
            for i in range(4):
                E(f"s_add_u32 m0, s44, {boff + 1024*i}")
                nop(1)
                E(f"buffer_load_dwordx4 v{10+i}, s[36:39], s10 offen lds")
            for i in range(6):
                E(f"s_add_u32 m0, s45, {boff + 1024*i}")
                nop(1)
                E(f"buffer_load_dwordx4 v{14+i}, s[40:43], s46 offen lds")
            E("s_add_u32 s10, s10, 128")
            E(f"s_add_u32 s46, s46, {64*RS}")

        def reads(buf, kk):
            boff = buf * STG1
            for j in range(4):
                r = XF[kk] + 4 * j
                E(f"ds_read_b128 v[{r}:{r+3}], v{20+kk} offset:{boff + 2048*j}")
            for t, (ar, imm) in enumerate(tiles):
                r = WF[kk] + 4 * t
                o = boff + imm + kk * 6144
                E(f"ds_read_b64_tr_b16 v[{r}:{r+1}], v{ar} offset:{o}")
                E(f"ds_read_b64_tr_b16 v[{r+2}:{r+3}], v{ar} offset:{o+768}")

        def mfmas(kk):
            for t in range(NT):
                for j in range(4):
                    a = ACC + (t * 4 + j) * 4
                    w = WF[kk] + 4 * t
                    x = XF[kk] + 4 * j
                    E(f"v_mfma_f32_16x16x32_bf16 v[{a}:{a+3}], v[{w}:{w+3}], v[{x}:{x+3}], v[{a}:{a+3}]")

        nreads = 4 + 2 * NT
        dma(0)
        for s in range(10):
            buf = s & 1
            E("s_waitcnt vmcnt(0)")
            E("s_barrier")
            if s < 9:
                dma(buf ^ 1)
            reads(buf, 0)
            reads(buf, 1)
            E(f"s_waitcnt lgkmcnt({min(nreads,15)})")
            mfmas(0)
            E("s_waitcnt lgkmcnt(0)")
            mfmas(1)
        nop(10)
        E("s_lshl_b32 s4, s6, 7")
        E("s_add_u32 s4, s4, s13")
        E("v_add_u32 v5, s4, v3")
        if gu:
            srd(44, P_WS, S * F * 2, WS_H)
            E(f"v_mul_u32_u24 v5, {F*2}, v5")
            E("v_lshl_add_u32 v5, v4, 3, v5")
            E("s_mul_i32 s4, s12, 96")
            E("s_add_u32 s4, s4, s15")
            E("v_add_u32 v5, s4, v5")
            for t in range(3):
                for j in range(4):
                    ga = ACC + (t * 4 + j) * 4
                    ua = ACC + ((t + 3) * 4 + j) * 4
                    for p in range(2):
                        a, b = ga + 2 * p, ga + 2 * p + 1
                        c, d = ua + 2 * p, ua + 2 * p + 1
                        bf16r2(a, b, 6)
                        bf16r2(c, d, 6)
                        for r in (a, b):
                            E(f"v_mul_f32 v{r}, {hex(LOG2E ^ 0x80000000)}, v{r}")
                            E(f"v_exp_f32 v{r}, v{r}")
                            nop(1)
                            E(f"v_add_f32 v{r}, 1.0, v{r}")
                            E(f"v_rcp_f32 v{r}, v{r}")
                        nop(1)
                        bf16r2(a, b, 6)
                        E(f"v_mul_f32 v{a}, v{a}, v{c}")
                        E(f"v_mul_f32 v{b}, v{b}, v{d}")
                        E(f"v_cvt_pk_bf16_f32 v{8+p}, v{a}, v{b}")
                    E(f"buffer_store_dwordx2 v[8:9], v5, s[44:47], 0 offen offset:{t*32}" +
                      ("" if j == 0 else ""))
                    if True:
                        pass
                    if j < 3:
                        E(f"v_add_u32 v5, {16*F*2}, v5")
                    nop(1)
                E(f"v_subrev_u32 v5, {48*F*2}, v5")
            E("s_branch g1_done")
        else:
            def phi4(a):
                for p in range(2):
                    x, y = a + 2 * p, a + 2 * p + 1
                    bf16r2(x, y, 6)
                    E(f"v_add_f32 v24, 1.0, v{x}")
                    E(f"v_add_f32 v25, 1.0, v{y}")
                    bf16r2(24, 25, 6)
                    E(f"v_mul_f32 v26, {hex(LOG2E)}, v{x}")
                    E(f"v_mul_f32 v27, {hex(LOG2E)}, v{y}")
                    E("v_exp_f32 v26, v26")
                    E("v_exp_f32 v27, v27")
                    nop(1)
                    bf16r2(26, 27, 6)
                    E(f"v_cmp_lt_f32 vcc, 0, v{x}")
                    nop(2)
                    E("v_cndmask_b32 v24, v26, v24, vcc")
                    E(f"v_cmp_lt_f32 vcc, 0, v{y}")
                    nop(2)
                    E("v_cndmask_b32 v25, v27, v25, vcc")
                    E(f"v_add_f32 v24, {hex(EPS6)}, v24")
                    E(f"v_add_f32 v25, {hex(EPS6)}, v25")
                    E(f"v_cvt_pk_bf16_f32 v{8+p}, v24, v25")

            def plain4(a):
                E(f"v_cvt_pk_bf16_f32 v8, v{a}, v{a+1}")
                E(f"v_cvt_pk_bf16_f32 v9, v{a+2}, v{a+3}")

            E("s_cmp_lt_u32 s7, 8")
            E("s_cbranch_scc1 g1_kv")
            srd(44, P_WS, S * D * 2, WS_PQ)
            E("v_mul_u32_u24 v5, 1280, v5")
            E("v_lshl_add_u32 v5, v4, 3, v5")
            E("s_sub_u32 s4, s7, 8")
            E("s_mul_i32 s4, s4, 320")
            E("s_mul_i32 s5, s12, 160")
            E("s_add_u32 s4, s4, s5")
            E("v_add_u32 v5, s4, v5")
            for j in range(4):
                for t in range(5):
                    phi4(ACC + (t * 4 + j) * 4)
                    E(f"buffer_store_dwordx2 v[8:9], v5, s[44:47], 0 offen offset:{t*32}")
                    nop(1)
                if j < 3:
                    E(f"v_add_u32 v5, {16*1280}, v5")
            E("s_branch g1_done")
            E("g1_kv:")
            E("s_barrier")
            E("v_add_u32 v5, s13, v3")
            E("v_mul_u32_u24 v5, 320, v5")
            E("v_lshl_add_u32 v5, v4, 3, v5")
            E("s_mul_i32 s4, s12, 160")
            E("v_add_u32 v5, s4, v5")
            E("s_cmp_eq_u32 s12, 0")
            E("s_cbranch_scc0 g1_kv_v")
            for j in range(4):
                for t in range(5):
                    phi4(ACC + (t * 4 + j) * 4)
                    E(f"ds_write_b64 v5, v[8:9] offset:{j*16*320 + t*32}")
                    nop(1)
            E("s_branch g1_kv_w")
            E("g1_kv_v:")
            for j in range(4):
                for t in range(5):
                    plain4(ACC + (t * 4 + j) * 4)
                    E(f"ds_write_b64 v5, v[8:9] offset:{j*16*320 + t*32}")
                    nop(1)
            E("g1_kv_w:")
            E("s_waitcnt lgkmcnt(0)")
            E("s_barrier")
            E("v_lshlrev_b32 v5, 3, v4")
            E("v_lshrrev_b32 v6, 2, v3")
            E("v_add_u32 v5, v5, v6")
            E("v_mul_u32_u24 v5, 320, v5")
            E("v_and_b32 v6, 3, v3")
            E("v_lshl_add_u32 v5, v6, 3, v5")
            E("s_mul_i32 s4, s8, 40")
            E("v_add_u32 v5, s4, v5")
            for r in range(24):
                E(f"v_mov_b32 v{100+r}, 0")
            for r in range(4):
                E(f"v_mov_b32 v{30+r}, 0x3f803f80")
            for ks in range(4):
                o = ks * 32 * 320
                for dt in range(2):
                    E(f"ds_read_b64_tr_b16 v[{40+4*dt}:{41+4*dt}], v5 offset:{o + dt*32}")
                    E(f"ds_read_b64_tr_b16 v[{42+4*dt}:{43+4*dt}], v5 offset:{o + dt*32 + 1280}")
                for et in range(2):
                    E(f"ds_read_b64_tr_b16 v[{48+4*et}:{49+4*et}], v5 offset:{o + 160 + et*32}")
                    E(f"ds_read_b64_tr_b16 v[{50+4*et}:{51+4*et}], v5 offset:{o + 160 + et*32 + 1280}")
                E("s_waitcnt lgkmcnt(0)")
                for et in range(2):
                    for dt in range(2):
                        a = 100 + (et * 2 + dt) * 4
                        E(f"v_mfma_f32_16x16x32_bf16 v[{a}:{a+3}], v[{48+4*et}:{51+4*et}], v[{40+4*dt}:{43+4*dt}], v[{a}:{a+3}]")
                for dt in range(2):
                    a = 116 + dt * 4
                    E(f"v_mfma_f32_16x16x32_bf16 v[{a}:{a+3}], v[30:33], v[{40+4*dt}:{43+4*dt}], v[{a}:{a+3}]")
            nop(10)
            srd(44, P_WS, 16 * 32 * 420 * 4, WS_KVP)
            E("s_lshl_b32 s4, s6, 5")
            E("s_lshl_b32 s5, s7, 2")
            E("s_add_u32 s4, s4, s5")
            E("s_add_u32 s4, s4, s8")
            E("s_mul_i32 s4, s4, 1680")
            E("v_mov_b32 v9, 0x7ff00000")
            for et in range(2):
                for dt in range(2):
                    a = 100 + (et * 2 + dt) * 4
                    E(f"v_add_u32 v5, {16*dt}, v3")
                    E(f"v_lshl_add_u32 v6, v4, 2, {16*et}")
                    E("v_mul_u32_u24 v7, 80, v5")
                    E("v_lshl_add_u32 v7, v6, 2, v7")
                    E("v_add_u32 v7, s4, v7")
                    E("v_cmp_gt_u32 vcc, 20, v5")
                    nop(2)
                    E("v_cndmask_b32 v7, v9, v7, vcc")
                    E("v_cmp_gt_u32 vcc, 20, v6")
                    nop(2)
                    E("v_cndmask_b32 v7, v9, v7, vcc")
                    E(f"buffer_store_dwordx4 v[{a}:{a+3}], v7, s[44:47], 0 offen")
            for dt in range(2):
                a = 116 + dt * 4
                E(f"v_add_u32 v5, {16*dt}, v3")
                E("v_lshlrev_b32 v7, 2, v5")
                E("v_add_u32 v7, s4, v7")
                E("v_cmp_gt_u32 vcc, 20, v5")
                nop(2)
                E("v_cndmask_b32 v7, v9, v7, vcc")
                E("v_cmp_eq_u32 vcc, 0, v4")
                nop(2)
                E("v_cndmask_b32 v7, v9, v7, vcc")
                E(f"buffer_store_dword v{a}, v7, s[44:47], 0 offen offset:1600")
            E("s_branch g1_done")
    E("g1_done:")
    E("s_endpgm")
    return name, kernel_desc(name, 248)


STG2 = 32768


def gen_ks(name, final):
    kernel_begin(name)
    K = D if final else F
    NST = (K + 127) // 128
    ARS = K * 2
    NOW = 0 if final else 256
    NWG = 320 + NOW
    E(f"s_cmp_ge_u32 s2, {NWG}")
    E(f"s_cbranch_scc1 {name}_done")
    load_ptrs()
    E("v_lshrrev_b32 v1, 6, v0")
    nop(1)
    E("v_readfirstlane_b32 s8, v1")
    E("v_and_b32 v2, 63, v0")
    E("v_and_b32 v3, 15, v2")
    E("v_lshrrev_b32 v4, 4, v2")
    E("s_waitcnt lgkmcnt(0)")
    if NOW:
        E(f"s_cmp_ge_u32 s2, {NOW}")
        E(f"s_cbranch_scc1 {name}_gemm")
        gen_o(name)
        E(f"{name}_gemm:")
        E(f"s_sub_u32 s2, s2, {NOW}")
    E("s_and_b32 s6, s2, 31")
    E("s_lshr_b32 s7, s2, 5")
    srd(36, P_WS, S * K * 2, WS_O if final else WS_H)
    srd(40, P_WO if final else P_WD, K * D * 2)
    E("s_lshl_b32 s9, s8, 4")
    E("v_lshrrev_b32 v5, 4, v2")
    E("v_add_u32 v5, s9, v5")
    E("v_and_b32 v6, 15, v2")
    for i in range(4):
        E(f"v_add_u32 v7, {4*i}, v5")
        E("v_and_b32 v8, 15, v7")
        E("v_xor_b32 v8, v8, v6")
        E(f"v_mul_u32_u24 v7, {ARS}, v7")
        E(f"v_lshl_add_u32 v{10+i}, v8, 4, v7")
    E(f"s_mul_i32 s10, s6, {64*ARS}")
    E("s_lshl_b32 s9, s8, 5")
    E("v_lshrrev_b32 v5, 3, v2")
    E("v_add_u32 v5, s9, v5")
    E("v_and_b32 v6, 7, v2")
    for i in range(4):
        E(f"v_add_u32 v7, {8*i}, v5")
        E("v_bfe_u32 v8, v7, 1, 1")
        E("v_bfe_u32 v9, v7, 3, 1")
        E("v_lshl_add_u32 v8, v9, 1, v8")
        E("v_lshlrev_b32 v8, 1, v8")
        E("v_xor_b32 v8, v8, v6")
        E("v_mul_u32_u24 v7, 1280, v7")
        E(f"v_lshl_add_u32 v{14+i}, v8, 4, v7")
    E("s_lshl_b32 s11, s7, 7")
    E("s_lshl_b32 s44, s8, 12")
    E("s_add_u32 s45, s44, 16384")
    E("s_lshl_b32 s4, s8, 2")
    E("v_add_u32 v5, s4, v4")
    E("v_xor_b32 v5, v5, v3")
    E("v_lshlrev_b32 v6, 8, v3")
    E("v_lshl_add_u32 v20, v5, 4, v6")
    E("s_lshl_b32 s4, s8, 5")
    E("v_lshlrev_b32 v5, 3, v4")
    E("v_add_u32 v5, s4, v5")
    E("v_lshrrev_b32 v6, 2, v3")
    E("v_add_u32 v5, v5, v6")
    E("v_lshlrev_b32 v5, 7, v5")
    E("v_and_b32 v6, 3, v3")
    E("v_lshl_add_u32 v5, v6, 3, v5")
    E("v_add_u32 v5, 16384, v5")
    E("v_bfe_u32 v6, v3, 3, 1")
    E("v_and_b32 v7, 1, v4")
    E("v_lshl_add_u32 v6, v7, 1, v6")
    for t in range(4):
        E(f"v_xor_b32 v7, {t}, v6")
        E(f"v_lshl_add_u32 v{22+t}, v7, 5, v5")
    ACC = 64
    XF, WF = 30, 46
    for r in range(64):
        E(f"v_mov_b32 v{ACC+r}, 0")

    def dma(buf):
        boff = buf * STG2
        for i in range(4):
            E(f"s_add_u32 m0, s44, {boff + 1024*i}")
            nop(1)
            E(f"buffer_load_dwordx4 v{10+i}, s[36:39], s10 offen lds")
        for i in range(4):
            E(f"s_add_u32 m0, s45, {boff + 1024*i}")
            nop(1)
            E(f"buffer_load_dwordx4 v{14+i}, s[40:43], s11 offen lds")
        E("s_add_u32 s10, s10, 256")
        E(f"s_add_u32 s11, s11, {128*1280}")

    dma(0)
    for s in range(NST):
        buf = s & 1
        boff = buf * STG2
        E("s_waitcnt vmcnt(0)")
        E("s_barrier")
        if s < NST - 1:
            dma(buf ^ 1)
        tail = (s == NST - 1) and (K % 128 != 0)
        if tail:
            E(f"s_cmp_ge_u32 s8, {(K%128)//32}")
            E(f"s_cbranch_scc1 {name}_skip")
        for j in range(4):
            E(f"ds_read_b128 v[{XF+4*j}:{XF+4*j+3}], v20 offset:{boff + 4096*j}")
        for t in range(4):
            E(f"ds_read_b64_tr_b16 v[{WF+4*t}:{WF+4*t+1}], v{22+t} offset:{boff}")
            E(f"ds_read_b64_tr_b16 v[{WF+4*t+2}:{WF+4*t+3}], v{22+t} offset:{boff+512}")
        E("s_waitcnt lgkmcnt(0)")
        for t in range(4):
            for j in range(4):
                a = ACC + (t * 4 + j) * 4
                E(f"v_mfma_f32_16x16x32_bf16 v[{a}:{a+3}], v[{WF+4*t}:{WF+4*t+3}], v[{XF+4*j}:{XF+4*j+3}], v[{a}:{a+3}]")
        if tail:
            E(f"{name}_skip:")
    nop(10)
    E("s_barrier")
    E("v_lshlrev_b32 v5, 4, v2")
    E("s_lshl_b32 s4, s8, 14")
    E("v_add_u32 v6, s4, v5")
    for tl in range(16):
        a = ACC + tl * 4
        E(f"ds_write_b128 v6, v[{a}:{a+3}] offset:{tl*1024}")
    E("s_waitcnt lgkmcnt(0)")
    E("s_barrier")
    E("s_lshl_b32 s4, s8, 12")
    E("v_add_u32 v6, s4, v5")
    for j in range(4):
        for w in range(4):
            r = ACC + (j * 4 + w) * 4
            E(f"ds_read_b128 v[{r}:{r+3}], v6 offset:{w*16384 + j*1024}")
    E("s_waitcnt lgkmcnt(0)")
    for j in range(4):
        b = ACC + j * 16
        for w in range(1, 4):
            for r in range(4):
                E(f"v_add_f32 v{b+r}, v{b+r}, v{b+4*w+r}")
    E("s_lshl_b32 s4, s6, 6")
    E("v_add_u32 v5, s4, v3")
    E("v_mul_u32_u24 v5, 1280, v5")
    E("v_lshl_add_u32 v5, v4, 3, v5")
    E("s_lshl_b32 s4, s7, 7")
    E("s_lshl_b32 s5, s8, 5")
    E("s_add_u32 s4, s4, s5")
    E("v_add_u32 v5, s4, v5")
    srd(44, P_WS, S * D * 2, WS_G)
    if not final:
        for j in range(4):
            b = ACC + j * 16
            for p in range(2):
                x, y = b + 2 * p, b + 2 * p + 1
                bf16r2(x, y, 6)
                for r in (x, y):
                    E(f"v_mul_f32 v7, {hex(LOG2E ^ 0x80000000)}, v{r}")
                    E("v_exp_f32 v7, v7")
                    nop(1)
                    E("v_add_f32 v7, 1.0, v7")
                    E("v_rcp_f32 v7, v7")
                    nop(1)
                    E(f"v_mul_f32 v{r}, v{r}, v7")
                E(f"v_cvt_pk_bf16_f32 v{8+p}, v{x}, v{y}")
            E(f"buffer_store_dwordx2 v[8:9], v5, s[44:47], 0 offen offset:0")
            nop(1)
            if j < 3:
                E(f"v_add_u32 v5, {16*1280}, v5")
    else:
        srd(48, P_X, S * D * 2)
        srd(52, P_OUT, S * D * 2)
        for j in range(4):
            E(f"v_add_u32 v7, {16*1280*j}, v5")
            E(f"buffer_load_dwordx2 v[{30+4*j}:{31+4*j}], v7, s[44:47], 0 offen")
            E(f"buffer_load_dwordx2 v[{32+4*j}:{33+4*j}], v7, s[48:51], 0 offen")
        E("s_waitcnt vmcnt(0)")
        for j in range(4):
            b = ACC + j * 16
            for p in range(2):
                x, y = b + 2 * p, b + 2 * p + 1
                gq, xq = 30 + 4 * j + p, 32 + 4 * j + p
                bf16r2(x, y, 6)
                E(f"v_lshlrev_b32 v24, 16, v{gq}")
                E(f"v_and_b32 v25, 0xffff0000, v{gq}")
                E(f"v_mul_f32 v{x}, v{x}, v24")
                E(f"v_mul_f32 v{y}, v{y}, v25")
                bf16r2(x, y, 6)
                E(f"v_lshlrev_b32 v24, 16, v{xq}")
                E(f"v_and_b32 v25, 0xffff0000, v{xq}")
                E(f"v_add_f32 v{x}, v{x}, v24")
                E(f"v_add_f32 v{y}, v{y}, v25")
                E(f"v_cvt_pk_bf16_f32 v{8+p}, v{x}, v{y}")
            E(f"buffer_store_dwordx2 v[8:9], v5, s[52:55], 0 offen offset:0")
            nop(1)
            if j < 3:
                E(f"v_add_u32 v5, {16*1280}, v5")
    E(f"{name}_done:")
    E("s_endpgm")
    return name, kernel_desc(name, 128)


def gen_o(name):
    E("s_and_b32 s6, s2, 7")
    E("s_lshr_b32 s7, s2, 3")
    E("s_lshl_b32 s9, s6, 2")
    E("s_add_u32 s9, s9, s8")
    srd(36, P_WS, 16 * 32 * 420 * 4, WS_KVP)
    E("s_mul_i32 s10, s9, 1680")
    E("v_lshlrev_b32 v5, 2, v2")
    for q in range(7):
        E(f"v_mov_b32 v{30+q}, 0")
    E("v_mov_b32 v9, 0x7ff00000")
    E("v_add_u32 v6, 1536, v5")
    E("v_cmp_gt_u32 vcc, 36, v2")
    nop(2)
    E("v_cndmask_b32 v6, v9, v6, vcc")
    for p4 in range(4):
        for pp in range(4):
            for q in range(6):
                E(f"buffer_load_dword v{40+pp*7+q}, v5, s[36:39], s10 offen offset:{256*q}")
            E(f"buffer_load_dword v{40+pp*7+6}, v6, s[36:39], s10 offen")
            E(f"s_add_u32 s10, s10, {32*1680}")
        E("s_waitcnt vmcnt(0)")
        for pp in range(4):
            for q in range(7):
                E(f"v_add_f32 v{30+q}, v{30+q}, v{40+pp*7+q}")
    E("v_mov_b32 v37, 0")
    for q in range(0, 8, 2):
        bf16r2(30 + q, 31 + q, 6)
    E("s_mul_i32 s4, s8, 1792")
    E("v_add_u32 v6, s4, v5")
    for q in range(7):
        E(f"ds_write_b32 v6, v{30+q} offset:{256*q}")
    srd(40, P_WS, S * D * 2, WS_PQ)
    srd(44, P_WS, S * D * 2, WS_O)
    E("s_lshl_b32 s4, s7, 6")
    E("v_add_u32 v7, s4, v2")
    E("v_mul_u32_u24 v7, 1280, v7")
    E("s_mul_i32 s4, s9, 40")
    E("v_add_u32 v7, s4, v7")
    for q in range(5):
        E(f"buffer_load_dwordx2 v[{40+2*q}:{41+2*q}], v7, s[40:43], 0 offen offset:{8*q}")
    E("s_waitcnt vmcnt(0) lgkmcnt(0)")
    for q in range(10):
        E(f"v_lshlrev_b32 v{50+2*q}, 16, v{40+q}")
        E(f"v_and_b32 v{51+2*q}, 0xffff0000, v{40+q}")
    for e in range(21):
        E(f"v_mov_b32 v{70+e}, 0")
    E("s_mul_i32 s4, s8, 1792")
    E("v_mov_b32 v6, s4")
    for d in range(21):
        for c in range(5):
            E(f"ds_read_b128 v[{96+4*c}:{99+4*c}], v6 offset:{d*80 + c*16}")
        E("s_waitcnt lgkmcnt(0)")
        if d < 20:
            for e in range(20):
                E(f"v_fmac_f32 v{70+e}, v{50+d}, v{96+e}")
        else:
            for e in range(20):
                E(f"v_fmac_f32 v90, v{50+e}, v{96+e}")
    E("v_mov_b32 v91, 0")
    bf16r2(90, 91, 6)
    E(f"v_add_f32 v90, {hex(EPS6)}, v90")
    bf16r2(90, 91, 6)
    E("v_rcp_f32 v91, v90")
    nop(1)
    for e in range(0, 20, 2):
        a, b = 70 + e, 71 + e
        bf16r2(a, b, 6)
        for r in (a, b):
            E(f"v_mul_f32 v92, v{r}, v91")
            E(f"v_fma_f32 v93, -v92, v90, v{r}")
            E(f"v_fma_f32 v{r}, v93, v91, v92")
        E(f"v_cvt_pk_bf16_f32 v{40+e//2}, v{a}, v{b}")
    for q in range(5):
        E(f"buffer_store_dwordx2 v[{40+2*q}:{41+2*q}], v7, s[44:47], 0 offen offset:{8*q}")
    E(f"s_branch {name}_done")


def main():
    hdr = open("cdna_kernels/%s.s.ref" % NAME).read().split("\n")
    top = [l for l in hdr if l.startswith(";") and "@launch" not in l]
    launches = [
        ("ln_kernel", 512, 0),
        ("g1_kernel", 480, 2 * STG1),
        ("g2_kernel", 576, 2 * STG2),
        ("g3_kernel", 320, 2 * STG2),
    ]
    top += [f"; @launch kernel={k} grid=({g},1,1) block=(256,1,1) lds={l}" for k, g, l in launches]
    E('.amdgcn_target "amdgcn-amd-amdhsa--gfx950"')
    E(".text")
    descs = []
    descs.append(gen_ln())
    descs.append(gen_g1())
    descs.append(gen_ks("g2_kernel", False))
    descs.append(gen_ks("g3_kernel", True))
    E('.section .rodata,"a"')
    body = "\n".join(top) + "\n" + "\n".join(out) + "\n" + "".join(d for _, d in descs)
    open("cdna_kernels/%s.s" % NAME, "w").write(body)


if __name__ == "__main__":
    main()
```

```python
import os

NAME = "recurrent_scan__linear_attn_block__glu_gated_glu__prompt"
S, D, H, DH, F = 2048, 640, 32, 20, 1728

WS_XN = 0
WS_PQ = WS_XN + S * D * 2
WS_H = WS_PQ + S * D * 2
WS_KVP = WS_H + S * F * 2
NPART = 8
KVP_HEAD = 21 * 128
KVP_PART = 32 * KVP_HEAD
KVP_SIZE = NPART * KVP_PART
WS_KVT = WS_KVP + KVP_SIZE
KVT_SIZE = 32 * 2048
WS_CNT = WS_KVT + KVT_SIZE
CNT_SIZE = 512
WS_END = WS_CNT + CNT_SIZE

LOG2E = 0x3fb8aa3b
EPS6 = 0x358637bd
EPS5 = 0x3727c5ac
OOB = 0x7ff00000

out = []
STAMP = os.environ.get("STAMP") is not None
XP = os.environ.get("XP", "").split(",")


def E(s=""):
    out.append("    " + s if s and not s.endswith(":") else s)


def nop(n):
    while n > 0:
        k = min(n, 16)
        E(f"s_nop {k-1}")
        n -= k


def load_ptrs():
    E("s_load_dwordx16 s[16:31], s[0:1], 0")
    E("s_load_dwordx4 s[32:35], s[0:1], 64")


def srd(d, base, nbytes, off=0):
    if off:
        E(f"s_add_u32 s{d}, s{base}, {off}")
        E(f"s_addc_u32 s{d+1}, s{base+1}, 0")
    else:
        E(f"s_mov_b32 s{d}, s{base}")
        E(f"s_mov_b32 s{d+1}, s{base+1}")
    E(f"s_and_b32 s{d+1}, s{d+1}, 0xffff")
    E(f"s_mov_b32 s{d+2}, {nbytes}")
    E(f"s_mov_b32 s{d+3}, 0x00020000")


P_X, P_WQKV, P_WO, P_WG, P_WU, P_WD, P_OUT, P_WS = 16, 18, 20, 24, 26, 28, 30, 34


def bf16r2(a, b, tmp):
    E(f"v_cvt_pk_bf16_f32 v{tmp}, v{a}, v{b}")
    E(f"v_lshlrev_b32 v{a}, 16, v{tmp}")
    E(f"v_and_b32 v{b}, 0xffff0000, v{tmp}")


def stamp(i):
    if not STAMP:
        return
    E("s_memtime s[68:69]")
    E("s_waitcnt lgkmcnt(0)")
    E(f"s_mov_b32 s{70+i}, s68")


def stamp_flush(n, wave_sreg=8, wsel=0):
    if not STAMP:
        return
    lab = f"stamp_skip{len(out)}"
    E(f"s_cmp_lg_u32 s{wave_sreg}, {wsel}")
    E(f"s_cbranch_scc1 {lab}")
    E("s_and_b32 s64, s2, 31")
    E("s_cmp_lg_u32 s64, 0")
    E(f"s_cbranch_scc1 {lab}")
    E("s_lshr_b32 s64, s2, 5")
    E("s_lshl_b32 s64, s64, 5")
    srd(80, 32, 256)
    for i in range(n):
        E(f"v_mov_b32 v1, s{70+i}")
        E(f"v_mov_b32 v0, {4*i}")
        E("buffer_store_dword v1, v0, s[80:83], s64 offen")
    E(f"{lab}:")


def kernel_begin(name):
    E(f".globl {name}")
    E(".p2align 8")
    E(f".type {name},@function")
    E(f"{name}:")


def kernel_desc(name, nvgpr, nsgpr=100):
    acc = (nvgpr + 3) // 4 * 4
    return f""".p2align 6
.amdhsa_kernel {name}
  .amdhsa_next_free_vgpr {nvgpr}
  .amdhsa_next_free_sgpr {nsgpr}
  .amdhsa_accum_offset {acc}
  .amdhsa_group_segment_fixed_size 0
  .amdhsa_kernarg_size 80
  .amdhsa_user_sgpr_count 2
  .amdhsa_user_sgpr_kernarg_segment_ptr 1
  .amdhsa_system_sgpr_workgroup_id_x 1
.end_amdhsa_kernel
"""


def wave_sum(v, t):
    for off in (0x041F, 0x081F, 0x101F, 0x201F, 0x401F):
        E(f"ds_swizzle_b32 v{t}, v{v} offset:{off}")
        E("s_waitcnt lgkmcnt(0)")
        E(f"v_add_f32 v{v}, v{v}, v{t}")
    nop(1)
    E(f"v_readlane_b32 s4, v{v}, 32")
    E(f"v_readlane_b32 s5, v{v}, 0")
    nop(2)
    E(f"v_mov_b32 v{v}, s4")
    E(f"v_add_f32 v{v}, s5, v{v}")


def gen_ln():
    name = "ln_kernel"
    kernel_begin(name)
    E("s_cmp_ge_u32 s2, 512")
    E("s_cbranch_scc1 ln_done")
    load_ptrs()
    E("v_lshrrev_b32 v1, 6, v0")
    E("v_and_b32 v2, 63, v0")
    E("v_lshl_add_u32 v1, s2, 2, v1")
    E("v_mul_u32_u24 v1, 1280, v1")
    E("v_lshl_add_u32 v1, v2, 2, v1")
    E("s_waitcnt lgkmcnt(0)")
    srd(36, P_X, S * D * 2)
    srd(40, P_WS, S * D * 2, WS_XN)
    for j in range(5):
        E(f"buffer_load_dword v{10+j}, v1, s[36:39], 0 offen offset:{256*j}")
    E("s_cmp_lg_u32 s2, 0")
    E("s_cbranch_scc1 ln_nz")
    srd(44, P_WS, CNT_SIZE, WS_CNT)
    E("v_lshlrev_b32 v30, 2, v0")
    E("v_mov_b32 v31, 0")
    E("buffer_store_dword v31, v30, s[44:47], 0 offen")
    E("ln_nz:")
    E("s_waitcnt vmcnt(0)")
    for j in range(5):
        E(f"v_lshlrev_b32 v{20+2*j}, 16, v{10+j}")
        E(f"v_and_b32 v{21+2*j}, 0xffff0000, v{10+j}")
    E("v_add_f32 v3, v20, v21")
    for j in range(2, 10):
        E(f"v_add_f32 v3, v3, v{20+j}")
    wave_sum(3, 4)
    E("v_mul_f32 v3, 0x3acccccd, v3")
    E("v_mov_b32 v5, 0")
    for j in range(10):
        E(f"v_sub_f32 v6, v{20+j}, v3")
        E("v_fmac_f32 v5, v6, v6")
    wave_sum(5, 6)
    E("v_mul_f32 v5, 0x3acccccd, v5")
    bf16r2(3, 5, 7)
    E(f"v_add_f32 v5, {hex(EPS5)}, v5")
    E("v_mov_b32 v6, 0")
    bf16r2(5, 6, 7)
    E("v_sqrt_f32 v5, v5")
    nop(1)
    bf16r2(5, 6, 7)
    E("v_rcp_f32 v8, v5")
    nop(1)
    for j in range(0, 10, 2):
        a, b = 20 + j, 21 + j
        E(f"v_sub_f32 v{a}, v{a}, v3")
        E(f"v_sub_f32 v{b}, v{b}, v3")
        bf16r2(a, b, 7)
        for r in (a, b):
            E(f"v_mul_f32 v9, v{r}, v8")
            E(f"v_fma_f32 v6, -v9, v5, v{r}")
            E(f"v_fma_f32 v{r}, v6, v8, v9")
        E(f"v_cvt_pk_bf16_f32 v{10+j//2}, v{a}, v{b}")
    for j in range(5):
        E(f"buffer_store_dword v{10+j}, v1, s[40:43], 0 offen offset:{256*j}")
    E("ln_done:")
    E("s_endpgm")
    return name, kernel_desc(name, 32)


STG1 = 28672
RING1 = 5


def interleave(main, fill, start=0, every=1):
    fi = 0
    for n, m in enumerate(main):
        E(m)
        if n >= start and (n - start) % every == 0 and fi < len(fill):
            E(fill[fi])
            fi += 1
    while fi < len(fill):
        E(fill[fi])
        fi += 1


def gen_g1():
    name = "g1_kernel"
    kernel_begin(name)
    NWG = 240
    E(f"s_cmp_ge_u32 s2, {NWG}")
    E("s_cbranch_scc1 g1_exit")
    load_ptrs()
    E("s_and_b32 s6, s2, 7")
    E("s_mul_i32 s6, s6, 30")
    E("s_lshr_b32 s7, s2, 3")
    E("s_add_u32 s7, s7, s6")
    E("s_and_b32 s6, s7, 7")
    E("s_lshr_b32 s7, s7, 3")
    E("v_lshrrev_b32 v1, 6, v0")
    E("v_and_b32 v2, 63, v0")
    E("v_readfirstlane_b32 s8, v1")
    E("v_and_b32 v3, 15, v2")
    E("v_lshrrev_b32 v4, 4, v2")
    E("s_lshr_b32 s11, s8, 1")
    E("s_and_b32 s12, s8, 1")
    E("s_lshl_b32 s13, s11, 6")
    E("s_mov_b32 s60, 0")
    E("s_mov_b32 s61, 0")
    E("s_waitcnt lgkmcnt(0)")
    stamp(0)
    E("s_cmp_lt_u32 s7, 12")
    E("s_cbranch_scc1 g1_qkv")
    E("s_branch g1_gu")

    for typ in ("qkv", "gu"):
        E(f"g1_{typ}:")
        gu = typ == "gu"
        NT = 6 if gu else 5
        RS = F * 2 if gu else 3 * D * 2
        NV = 96 if gu else 80
        ACC = 100
        XF = [30, 46]
        WF = [200, 224]

        for role in ("a", "b"):
            P = 4 if role == "a" else 3
            if role == "a":
                E("s_cmp_lt_u32 s8, 4")
                E(f"s_cbranch_scc0 g1_{typ}_b")
                srd(36, P_WS, S * D * 2, WS_XN)
                E("s_lshl_b32 s9, s8, 6")
                E("v_lshrrev_b32 v5, 2, v2")
                E("v_add_u32 v5, s9, v5")
                E("v_and_b32 v6, 3, v2")
                E("v_lshrrev_b32 v8, 2, v5")
                E("v_sub_u32 v8, 0, v8")
                E("v_and_b32 v8, 3, v8")
                E("v_xor_b32 v8, v8, v6")
                E("v_mul_u32_u24 v7, 1280, v5")
                E("v_lshl_add_u32 v10, v8, 4, v7")
                for i in range(1, 4):
                    E(f"v_add_u32 v{10+i}, {16*1280*i}, v10")
                E("s_mul_i32 s10, s6, 327680")
                E("s_mov_b32 s46, 64")
                E("s_lshl_b32 s44, s8, 12")
            else:
                E(f"g1_{typ}_b:")
                E("s_bfe_u32 s14, s8, 0x10001")
                if gu:
                    E("s_sub_u32 s15, s7, 12")
                    E("s_mul_i32 s15, s15, 192")
                    E("s_cmp_eq_u32 s14, 0")
                    E(f"s_cselect_b32 s36, s{P_WG}, s{P_WU}")
                    E(f"s_cselect_b32 s37, s{P_WG+1}, s{P_WU+1}")
                    E("s_and_b32 s37, s37, 0xffff")
                    E(f"s_mov_b32 s38, {D*F*2}")
                    E("s_mov_b32 s39, 0x00020000")
                else:
                    E("s_cmp_lt_u32 s7, 8")
                    E("s_cbranch_scc0 g1_qcol")
                    E("s_mul_i32 s15, s7, 80")
                    E("s_mul_i32 s4, s14, 640")
                    E("s_add_u32 s15, s15, s4")
                    E("s_add_u32 s15, s15, 640")
                    E("s_branch g1_colok")
                    E("g1_qcol:")
                    E("s_sub_u32 s15, s7, 8")
                    E("s_mul_i32 s15, s15, 160")
                    E("s_mul_i32 s4, s14, 80")
                    E("s_add_u32 s15, s15, s4")
                    E("g1_colok:")
                    E("s_lshl_b32 s15, s15, 1")
                    srd(36, P_WQKV, D * 3 * D * 2)
                E("s_mul_i32 s4, s12, 192")
                E(f"v_mov_b32 v9, {hex(OOB)}")
                for i in range(3):
                    E("v_add_u32 v5, s4, v2")
                    if i:
                        E(f"v_add_u32 v5, {64*i}, v5")
                    E("v_mul_u32_u24 v6, 43691, v5")
                    E("v_lshrrev_b32 v6, 19, v6")
                    E("v_mul_u32_u24 v7, 12, v6")
                    E("v_sub_u32 v7, v5, v7")
                    E("v_bfe_u32 v8, v6, 3, 1")
                    E("v_lshlrev_b32 v8, 1, v8")
                    E("v_xor_b32 v7, v7, v8")
                    E(f"v_mul_u32_u24 v6, {RS}, v6")
                    E("v_lshl_add_u32 v6, v7, 4, v6")
                    E(f"v_add_u32 v{10+i}, s15, v6")
                    if NV < 96:
                        E(f"v_cmp_gt_u32 vcc, {NV//8}, v7")
                        nop(2)
                        E(f"v_cndmask_b32 v{10+i}, v9, v{10+i}, vcc")
                E("s_mov_b32 s10, 0")
                E(f"s_mov_b32 s46, {32*RS}")
                if "bflat" in XP:
                    for i in range(3):
                        E("v_add_u32 v5, s4, v2")
                        E(f"v_add_u32 v5, {64*i}, v5")
                        E(f"v_lshlrev_b32 v{10+i}, 4, v5")
                    E("s_mul_i32 s10, s7, 61440")
                    E("s_mul_i32 s5, s14, 6144")
                    E("s_add_u32 s10, s10, s5")
                    E("s_mov_b32 s46, 12288")
                if "bws" in XP:
                    srd(36, P_WS, S * F * 2, WS_H)
                E("s_mul_i32 s44, s14, 6144")
                E("s_lshl_b32 s4, s4, 4")
                E("s_add_u32 s44, s44, s4")
                E("s_add_u32 s44, s44, 16384")

            def dma():
                E("s_add_u32 s4, s44, s61")
                for i in range(P):
                    if i:
                        E("s_add_u32 s4, s4, 1024")
                    E("s_mov_b32 m0, s4")
                    nop(1)
                    E(f"buffer_load_dwordx4 v{10+i}, s[36:39], s10 offen lds")
                E("s_add_u32 s10, s10, s46")
                E(f"s_add_u32 s61, s61, {STG1}")
                E(f"s_cmp_eq_u32 s61, {RING1*STG1}")
                E("s_cselect_b32 s61, 0, s61")

            for st in range(RING1 - 1):
                dma()
            stamp(1)
            E("v_lshrrev_b32 v6, 2, v3")
            E("v_sub_u32 v6, 0, v6")
            E("v_and_b32 v6, 3, v6")
            E("v_xor_b32 v6, v6, v4")
            E("v_add_u32 v5, s13, v3")
            E("v_lshlrev_b32 v5, 6, v5")
            E("v_lshl_add_u32 v20, v6, 4, v5")
            E("v_lshlrev_b32 v5, 3, v4")
            E("v_lshrrev_b32 v6, 2, v3")
            E("v_add_u32 v5, v5, v6")
            E("v_mul_u32_u24 v5, 192, v5")
            E("v_and_b32 v6, 3, v3")
            E("v_lshl_add_u32 v5, v6, 3, v5")
            E("v_add_u32 v5, 16384, v5")
            E("v_and_b32 v6, 1, v4")
            E("v_lshlrev_b32 v6, 5, v6")
            if gu:
                E("s_mul_i32 s4, s12, 96")
            else:
                E("s_mul_i32 s4, s12, 6144")
            E("v_add_u32 v5, s4, v5")
            E("v_add_u32 v22, v5, v6")
            E("v_sub_u32 v23, v5, v6")
            tiles = []
            if gu:
                lab = f"g1_noswap_{role}"
                E("s_cmp_eq_u32 s12, 1")
                E(f"s_cbranch_scc0 {lab}")
                E("v_mov_b32 v5, v22")
                E("v_mov_b32 v22, v23")
                E("v_mov_b32 v23, v5")
                E(f"{lab}:")
                for sub in range(2):
                    for t in range(3):
                        tiles.append((22 + (t & 1), sub * 6144 + t * 32))
            else:
                for t in range(5):
                    tiles.append((22 + (t & 1), t * 32))
            for r in range(NT * 16):
                E(f"v_mov_b32 v{ACC+r}, 0")

            def reads(kk):
                L = ["v_add_u32 v24, s60, v20", "v_add_u32 v25, s60, v22", "v_add_u32 v26, s60, v23"]
                for j in range(4):
                    r = XF[kk] + 4 * j
                    L.append(f"ds_read_b128 v[{r}:{r+3}], v24 offset:{1024*j}")
                for t, (ar, imm) in enumerate(tiles):
                    r = WF[kk] + 4 * t
                    L.append(f"ds_read_b64_tr_b16 v[{r}:{r+1}], v{ar+3} offset:{imm}")
                    L.append(f"ds_read_b64_tr_b16 v[{r+2}:{r+3}], v{ar+3} offset:{imm+768}")
                L.append(f"s_add_u32 s60, s60, {STG1}")
                L.append(f"s_cmp_eq_u32 s60, {RING1*STG1}")
                L.append("s_cselect_b32 s60, 0, s60")
                return L

            def mfmas(kk):
                L = []
                for t in range(NT):
                    for j in range(4):
                        a = ACC + (t * 4 + j) * 4
                        w = WF[kk] + 4 * t
                        x = XF[kk] + 4 * j
                        L.append(f"v_mfma_f32_16x16x32_bf16 v[{a}:{a+3}], v[{w}:{w+3}], v[{x}:{x+3}], v[{a}:{a+3}]")
                return L

            NS = 20
            early = role == "a"
            E(f"s_waitcnt vmcnt({P*(RING1-3)})")
            E("s_barrier")
            stamp(2)
            for l in reads(0):
                E(l)
            E("s_waitcnt lgkmcnt(0)")

            def stage(kk, do_dma, do_reads, nwait):
                if "nodma" in XP:
                    do_dma = False
                if "noread" in XP:
                    do_reads = False
                if early and do_dma:
                    dma()
                interleave(mfmas(kk) if "nomfma" not in XP else [], reads(kk ^ 1) if do_reads else [])
                if (not early) and do_dma:
                    dma()
                if nwait is not None:
                    E(f"s_waitcnt vmcnt({P*nwait}) lgkmcnt(0)")
                    if "nobar" not in XP:
                        E("s_barrier")

            M = 16
            E(f"s_mov_b32 s62, {M//2}")
            E(f"g1_{typ}_{role}_loop:")
            for u in range(2):
                stage(u, True, True, RING1 - 3)
            E("s_sub_u32 s62, s62, 1")
            E("s_cmp_lg_u32 s62, 0")
            E(f"s_cbranch_scc1 g1_{typ}_{role}_loop")
            for s in range(M, NS):
                rem = NS - (s + 3)
                stage(s & 1, False, s + 1 < NS, max(rem, 0) if s + 2 < NS else None)
                if s + 2 >= NS and s + 1 < NS:
                    E("s_waitcnt lgkmcnt(0)")
            if role == "a":
                E(f"s_branch g1_{typ}_epi")
        E(f"g1_{typ}_epi:")
        nop(10)
        stamp(3)
        E("s_lshl_b32 s4, s6, 8")
        E("s_add_u32 s4, s4, s13")
        E("v_add_u32 v5, s4, v3")
        E(f"s_mov_b32 s50, {hex(LOG2E ^ 0x80000000)}")
        E(f"s_mov_b32 s51, {hex(LOG2E ^ 0x80000000)}")
        E("s_mov_b32 s52, 1.0")
        E("s_mov_b32 s53, 1.0")
        if gu:
            srd(44, P_WS, S * F * 2, WS_H)
            E("s_sub_u32 s15, s7, 12")
            E("s_mul_i32 s15, s15, 192")
            E(f"v_mul_u32_u24 v5, {F*2}, v5")
            E("v_lshl_add_u32 v5, v4, 3, v5")
            E("s_mul_i32 s4, s12, 96")
            E("s_add_u32 s4, s4, s15")
            E("v_add_u32 v5, s4, v5")
            for t in range(3):
                for j in range(4):
                    ga = ACC + (t * 4 + j) * 4
                    ua = ACC + ((t + 3) * 4 + j) * 4
                    for p in range(2):
                        a, b = ga + 2 * p, ga + 2 * p + 1
                        c, d = ua + 2 * p, ua + 2 * p + 1
                        bf16r2(a, b, 6)
                        E(f"v_pk_mul_f32 v[{a}:{b}], v[{a}:{b}], s[50:51]")
                        E(f"v_exp_f32 v{a}, v{a}")
                        E(f"v_exp_f32 v{b}, v{b}")
                        bf16r2(c, d, 7)
                        E(f"v_pk_add_f32 v[{a}:{b}], v[{a}:{b}], s[52:53]")
                        E(f"v_rcp_f32 v{a}, v{a}")
                        E(f"v_rcp_f32 v{b}, v{b}")
                        nop(1)
                        bf16r2(a, b, 6)
                        E(f"v_pk_mul_f32 v[{a}:{b}], v[{a}:{b}], v[{c}:{d}]")
                        E(f"v_cvt_pk_bf16_f32 v{8+p}, v{a}, v{b}")
                    E(f"buffer_store_dwordx2 v[8:9], v5, s[44:47], 0 offen offset:{t*32}")
                    if j < 3:
                        E(f"v_add_u32 v5, {16*F*2}, v5")
                    nop(1)
                E(f"v_subrev_u32 v5, {48*F*2}, v5")
            E("s_branch g1_done")
        else:
            E(f"s_mov_b32 s54, {hex(LOG2E)}")
            E(f"s_mov_b32 s55, {hex(LOG2E)}")
            E(f"s_mov_b32 s56, {hex(EPS6)}")
            E(f"s_mov_b32 s57, {hex(EPS6)}")

            def phi4(a):
                for p in range(2):
                    x, y = a + 2 * p, a + 2 * p + 1
                    bf16r2(x, y, 6)
                    E(f"v_pk_mul_f32 v[26:27], v[{x}:{y}], s[54:55]")
                    E("v_exp_f32 v26, v26")
                    E("v_exp_f32 v27, v27")
                    E(f"v_pk_add_f32 v[24:25], v[{x}:{y}], s[52:53]")
                    E(f"v_cmp_lt_f32 vcc, 0, v{x}")
                    E(f"v_cmp_lt_f32 s[58:59], 0, v{y}")
                    nop(1)
                    E("v_cndmask_b32 v24, v26, v24, vcc")
                    E("v_cndmask_b32 v25, v27, v25, s[58:59]")
                    bf16r2(24, 25, 6)
                    E("v_pk_add_f32 v[24:25], v[24:25], s[56:57]")
                    E(f"v_cvt_pk_bf16_f32 v{8+p}, v24, v25")

            def plain4(a):
                E(f"v_cvt_pk_bf16_f32 v8, v{a}, v{a+1}")
                E(f"v_cvt_pk_bf16_f32 v9, v{a+2}, v{a+3}")

            E("s_cmp_lt_u32 s7, 8")
            E("s_cbranch_scc1 g1_kv")
            srd(44, P_WS, S * D * 2, WS_PQ)
            E("v_mul_u32_u24 v5, 1280, v5")
            E("v_lshl_add_u32 v5, v4, 3, v5")
            E("s_sub_u32 s4, s7, 8")
            E("s_mul_i32 s4, s4, 320")
            E("s_mul_i32 s5, s12, 160")
            E("s_add_u32 s4, s4, s5")
            E("v_add_u32 v5, s4, v5")
            for j in range(4):
                for t in range(5):
                    phi4(ACC + (t * 4 + j) * 4)
                    E(f"buffer_store_dwordx2 v[8:9], v5, s[44:47], 0 offen offset:{t*32}")
                    nop(1)
                if j < 3:
                    E(f"v_add_u32 v5, {16*1280}, v5")
            E("s_branch g1_done")
            E("g1_kv:")
            E("s_barrier")
            E("v_add_u32 v5, s13, v3")
            E("v_mul_u32_u24 v5, 320, v5")
            E("v_lshl_add_u32 v5, v4, 3, v5")
            E("s_mul_i32 s4, s12, 160")
            E("v_add_u32 v5, s4, v5")
            E("s_cmp_eq_u32 s12, 0")
            E("s_cbranch_scc0 g1_kv_v")
            for j in range(4):
                for t in range(5):
                    phi4(ACC + (t * 4 + j) * 4)
                    E(f"ds_write_b64 v5, v[8:9] offset:{j*16*320 + t*32}")
                    nop(1)
            E("s_branch g1_kv_w")
            E("g1_kv_v:")
            for j in range(4):
                for t in range(5):
                    plain4(ACC + (t * 4 + j) * 4)
                    E(f"ds_write_b64 v5, v[8:9] offset:{j*16*320 + t*32}")
                    nop(1)
            E("g1_kv_w:")
            E("s_waitcnt lgkmcnt(0)")
            E("s_barrier")
            E("s_and_b32 s14, s8, 3")
            E("s_lshr_b32 s15, s8, 2")
            E("v_lshlrev_b32 v5, 3, v4")
            E("v_lshrrev_b32 v6, 2, v3")
            E("v_add_u32 v5, v5, v6")
            E("v_mul_u32_u24 v5, 320, v5")
            E("v_and_b32 v6, 3, v3")
            E("v_lshl_add_u32 v5, v6, 3, v5")
            E("s_mul_i32 s4, s14, 40")
            E("s_mul_i32 s5, s15, 40960")
            E("s_add_u32 s4, s4, s5")
            E("v_add_u32 v5, s4, v5")
            for r in range(24):
                E(f"v_mov_b32 v{100+r}, 0")
            for r in range(4):
                E(f"v_mov_b32 v{30+r}, 0x3f803f80")
            for ks in range(4):
                o = ks * 32 * 320
                b0 = 40 + 16 * (ks & 1)
                for dt in range(2):
                    E(f"ds_read_b64_tr_b16 v[{b0+4*dt}:{b0+1+4*dt}], v5 offset:{o + dt*32}")
                    E(f"ds_read_b64_tr_b16 v[{b0+2+4*dt}:{b0+3+4*dt}], v5 offset:{o + dt*32 + 1280}")
                for et in range(2):
                    E(f"ds_read_b64_tr_b16 v[{b0+8+4*et}:{b0+9+4*et}], v5 offset:{o + 160 + et*32}")
                    E(f"ds_read_b64_tr_b16 v[{b0+10+4*et}:{b0+11+4*et}], v5 offset:{o + 160 + et*32 + 1280}")
                E("s_waitcnt lgkmcnt(0)")
                for dt in range(2):
                    for et in range(2):
                        a = 100 + (dt * 2 + et) * 4
                        E(f"v_mfma_f32_16x16x32_bf16 v[{a}:{a+3}], v[{b0+4*dt}:{b0+3+4*dt}], v[{b0+8+4*et}:{b0+11+4*et}], v[{a}:{a+3}]")
                for dt in range(2):
                    a = 116 + dt * 4
                    E(f"v_mfma_f32_16x16x32_bf16 v[{a}:{a+3}], v[{b0+4*dt}:{b0+3+4*dt}], v[30:33], v[{a}:{a+3}]")
            nop(10)
            E("v_lshlrev_b32 v5, 4, v2")
            E("s_mul_i32 s4, s14, 6144")
            E("s_add_u32 s4, s4, 90112")
            E("v_add_u32 v5, s4, v5")
            srd(44, P_WS, KVP_SIZE, WS_KVP)
            E("s_cmp_eq_u32 s15, 0")
            E("s_cbranch_scc1 g1_kv_c1")
            for tl in range(6):
                E(f"ds_write_b128 v5, v[{100+4*tl}:{103+4*tl}] offset:{tl*1024}")
            E("g1_kv_c1:")
            E("s_waitcnt lgkmcnt(0)")
            E("s_barrier")
            E("s_cmp_eq_u32 s15, 0")
            E("s_cbranch_scc0 g1_kv_st")
            for tl in range(6):
                E(f"ds_read_b128 v[{130+4*tl}:{133+4*tl}], v5 offset:{tl*1024}")
            E("s_waitcnt lgkmcnt(0)")
            for r in range(24):
                E(f"v_add_f32 v{100+r}, v{100+r}, v{130+r}")
            E("s_lshl_b32 s4, s6, 5")
            E("s_lshl_b32 s5, s7, 2")
            E("s_add_u32 s4, s4, s5")
            E("s_add_u32 s4, s4, s14")
            E(f"s_mul_i32 s4, s4, {KVP_HEAD}")
            E(f"v_mov_b32 v9, {hex(OOB)}")
            for dt in range(2):
                for et in range(2):
                    a = 100 + (dt * 2 + et) * 4
                    E(f"v_add_u32 v5, {16*et}, v3")
                    E(f"v_lshl_add_u32 v6, v4, 2, {16*dt}")
                    E("v_lshlrev_b32 v7, 7, v5")
                    E("v_lshl_add_u32 v7, v6, 2, v7")
                    E("v_add_u32 v7, s4, v7")
                    E("v_cmp_gt_u32 vcc, 20, v5")
                    E("v_cmp_gt_u32 s[58:59], 20, v6")
                    nop(1)
                    E("v_cndmask_b32 v7, v9, v7, vcc")
                    E("v_cndmask_b32 v7, v9, v7, s[58:59]")
                    E(f"buffer_store_dwordx4 v[{a}:{a+3}], v7, s[44:47], 0 offen sc1")
            for dt in range(2):
                a = 116 + dt * 4
                E(f"v_lshl_add_u32 v6, v4, 2, {16*dt}")
                E("v_lshlrev_b32 v7, 2, v6")
                E("v_add_u32 v7, s4, v7")
                E("v_cmp_gt_u32 vcc, 20, v6")
                E("v_cmp_eq_u32 s[58:59], 0, v3")
                nop(1)
                E("v_cndmask_b32 v7, v9, v7, vcc")
                E("v_cndmask_b32 v7, v9, v7, s[58:59]")
                E(f"buffer_store_dwordx4 v[{a}:{a+3}], v7, s[44:47], 0 offen offset:{20*128} sc1")
            E("g1_kv_st:")
            E("s_waitcnt vmcnt(0)")
            E("s_barrier")
            srd(48, P_WS, CNT_SIZE, WS_CNT)
            E("v_mov_b32 v6, 0")
            E("s_cmp_eq_u32 s8, 0")
            E("s_cbranch_scc0 g1_kv_na")
            E("s_lshl_b32 s4, s7, 6")
            E("v_mov_b32 v5, s4")
            E("v_mov_b32 v7, 1")
            E("s_mov_b64 exec, 1")
            E("buffer_atomic_add v7, v5, s[48:51], 0 offen sc0 sc1")
            E("s_waitcnt vmcnt(0)")
            E("ds_write_b32 v6, v7")
            E("s_waitcnt lgkmcnt(0)")
            E("s_mov_b64 exec, -1")
            E("g1_kv_na:")
            E("s_barrier")
            E("ds_read_b32 v7, v6")
            E("s_waitcnt lgkmcnt(0)")
            nop(1)
            E("v_readfirstlane_b32 s4, v7")
            nop(3)
            E(f"s_cmp_eq_u32 s4, {NPART-1}")
            E("s_cbranch_scc0 g1_done")
            E("v_lshrrev_b32 v5, 7, v0")
            E("v_bfe_u32 v6, v0, 2, 5")
            E("v_and_b32 v7, 3, v0")
            E("s_lshl_b32 s5, s7, 2")
            E("v_add_u32 v5, s5, v5")
            E(f"v_mul_u32_u24 v8, {KVP_HEAD}, v5")
            E("v_lshl_add_u32 v8, v6, 7, v8")
            E("v_lshl_add_u32 v8, v7, 5, v8")
            E("v_add_u32 v10, 16, v8")
            E(f"v_mov_b32 v9, {hex(OOB)}")
            E("v_cmp_gt_u32 vcc, 21, v6")
            E("v_cmp_gt_u32 s[58:59], 3, v7")
            nop(1)
            E("v_cndmask_b32 v8, v9, v8, vcc")
            E("v_cndmask_b32 v10, v9, v10, vcc")
            E("v_cndmask_b32 v8, v9, v8, s[58:59]")
            E("v_cmp_gt_u32 vcc, 2, v7")
            nop(2)
            E("v_cndmask_b32 v10, v9, v10, vcc")
            E("s_mov_b32 s4, 0")
            for p in range(NPART):
                E(f"buffer_load_dwordx4 v[{30+8*p}:{33+8*p}], v8, s[44:47], s4 offen sc1")
                E(f"buffer_load_dwordx4 v[{34+8*p}:{37+8*p}], v10, s[44:47], s4 offen sc1")
                if p < NPART - 1:
                    E(f"s_add_u32 s4, s4, {KVP_PART}")
            srd(48, P_WS, KVT_SIZE, WS_KVT)
            E("v_lshlrev_b32 v5, 11, v5")
            E("v_lshl_add_u32 v5, v6, 6, v5")
            E("v_lshl_add_u32 v5, v7, 4, v5")
            E("s_waitcnt vmcnt(0)")
            for p in range(1, NPART):
                for r in range(8):
                    E(f"v_add_f32 v{30+r}, v{30+r}, v{30+8*p+r}")
            for r in range(4):
                E(f"v_cvt_pk_bf16_f32 v{20+r}, v{30+2*r}, v{31+2*r}")
            E("buffer_store_dwordx4 v[20:23], v5, s[48:51], 0 offen")
            E("s_branch g1_done")
    E("g1_done:")
    stamp(4)
    stamp_flush(5)
    E("g1_exit:")
    E("s_endpgm")
    return name, kernel_desc(name, 248)


STG2 = 40960
RING2 = 4
ND = 14
NW = 4


class VQ:
    def __init__(self):
        self.q = []

    def issue(self, tag):
        self.q.append(tag)

    def wait(self, tag, extra=""):
        idx = max([i for i, t in enumerate(self.q) if t == tag], default=None)
        if idx is None:
            if extra:
                E(f"s_waitcnt {extra}")
            return
        n = len(self.q) - 1 - idx
        assert n <= 63
        E(f"s_waitcnt vmcnt({n}) {extra}".rstrip())
        self.q = self.q[idx + 1:]


def gen_tail():
    name = "g2_kernel"
    kernel_begin(name)
    NWG = 256
    E(f"s_cmp_ge_u32 s2, {NWG}")
    E(f"s_cbranch_scc1 {name}_exit")
    load_ptrs()
    E("v_lshrrev_b32 v1, 6, v0")
    E("v_and_b32 v2, 63, v0")
    E("v_readfirstlane_b32 s8, v1")
    E("v_and_b32 v3, 15, v2")
    E("v_lshrrev_b32 v4, 4, v2")
    E("s_bfe_u32 s7, s2, 0x30003")
    E("s_and_b32 s6, s2, 7")
    E("s_lshl_b32 s6, s6, 2")
    E("s_lshr_b32 s4, s2, 6")
    E("s_add_u32 s6, s6, s4")
    E("s_and_b32 s9, s8, 3")
    E("s_lshr_b32 s12, s8, 2")
    E("s_lshl_b32 s4, s8, 3")
    E("v_add_u32 v5, s4, v4")
    E("v_and_b32 v8, 15, v5")
    E("v_xor_b32 v8, v8, v3")
    E(f"v_mul_u32_u24 v7, {F*2}, v5")
    E("v_lshl_add_u32 v10, v8, 4, v7")
    E("v_add_u32 v5, 4, v5")
    E("v_and_b32 v8, 15, v5")
    E("v_xor_b32 v8, v8, v3")
    E(f"v_mul_u32_u24 v7, {F*2}, v5")
    E("v_lshl_add_u32 v11, v8, 4, v7")
    E(f"s_mul_i32 s10, s6, {64*F*2}")
    E(f"v_mov_b32 v9, {hex(OOB)}")

    def bidx(reg, sbase, i, swbit):
        E(f"v_add_u32 v5, s{sbase}, v2")
        if i:
            E(f"v_add_u32 v5, {64*i}, v5")
        E("v_mul_u32_u24 v6, 43691, v5")
        E("v_lshrrev_b32 v6, 19, v6")
        E("v_mul_u32_u24 v7, 12, v6")
        E("v_sub_u32 v7, v5, v7")
        E(f"v_bfe_u32 v8, v6, {swbit}, 1")
        E("v_lshlrev_b32 v8, 1, v8")
        E("v_xor_b32 v7, v7, v8")
        E("v_mul_u32_u24 v8, 1280, v6")
        E(f"v_lshl_add_u32 v{reg}, v7, 4, v8")
        E("v_cmp_gt_u32 vcc, 10, v7")
        nop(2)
        E(f"v_cndmask_b32 v{reg}, v9, v{reg}, vcc")

    E("s_mul_i32 s4, s8, 192")
    for i in range(3):
        bidx(12 + i, 4, i, 3)
    E("s_mul_i32 s11, s7, 160")
    if "tbflat" in XP:
        for i in range(3):
            E("v_add_u32 v5, s4, v2")
            E(f"v_add_u32 v5, {64*i}, v5")
            E(f"v_lshlrev_b32 v{12+i}, 4, v5")
        E("s_mul_i32 s11, s7, 20480")
    if "taflat" in XP:
        E("s_lshl_b32 s4, s8, 11")
        E("v_lshlrev_b32 v10, 4, v2")
        E("v_add_u32 v10, s4, v10")
        E("v_add_u32 v11, 1024, v10")
    E("s_lshl_b32 s44, s8, 11")
    E("s_mul_i32 s45, s8, 3072")
    E("s_add_u32 s45, s45, 16384")
    E("s_waitcnt lgkmcnt(0)")
    stamp(0)
    srd(36, P_WS, S * F * 2, WS_H)
    srd(40, P_WD, F * D * 2)
    E("s_cmp_eq_u32 s12, 0")
    E(f"s_cbranch_scc0 {name}_m1")

    ACCB, ACCS = 30, 70
    XF, WF = [110, 118], [126, 146]
    OF = 166
    RR = 70
    KVF = 94
    PQF = 230
    NV = 240

    for mh in range(2):
        if mh:
            E(f"{name}_m1:")
        early = mh == 0
        vq = VQ()

        def dma(st):
            slot = (st % RING2) * STG2
            if st < ND:
                for i in range(2):
                    E(f"s_add_u32 s4, s44, {slot + 1024*i}")
                    E("s_mov_b32 m0, s4")
                    nop(1)
                    E(f"buffer_load_dwordx4 v{10+i}, s[36:39], s10 offen lds")
                    vq.issue(("d", st))
                for i in range(3):
                    E(f"s_add_u32 s4, s45, {slot + 1024*i}")
                    E("s_mov_b32 m0, s4")
                    nop(1)
                    E(f"buffer_load_dwordx4 v{12+i}, s[40:43], s11 offen lds")
                    vq.issue(("d", st))
                E("s_add_u32 s10, s10, %d" % (16384 if "taflat" in XP else 256))
                E(f"s_add_u32 s11, s11, {128*1280}")
            else:
                if st == ND:
                    srd(40, P_WO, D * D * 2)
                    E("s_mul_i32 s11, s7, 160")
                    E("s_lshl_b32 s45, s8, 12")
                for i in range(4):
                    E(f"s_add_u32 s4, s45, {slot + 1024*i}")
                    E("s_mov_b32 m0, s4")
                    nop(1)
                    E(f"buffer_load_dwordx4 v{15+i}, s[40:43], s11 offen lds")
                    vq.issue(("d", st))
                E(f"s_add_u32 s11, s11, {160*1280}")

        for st in range(3):
            dma(st)
        stamp(1)
        E("s_lshl_b32 s4, s8, 8")
        for i in range(4):
            bidx(15 + i, 4, i, 2)
            E("v_cmp_gt_u32 vcc, 160, v6")
            nop(2)
            E(f"v_cndmask_b32 v{15+i}, v9, v{15+i}, vcc")
        E("s_lshl_b32 s4, s9, 2")
        E("v_add_u32 v5, s4, v4")
        E("v_xor_b32 v5, v5, v3")
        E(f"v_add_u32 v6, {32*mh}, v3")
        E("v_lshlrev_b32 v6, 8, v6")
        E("v_lshl_add_u32 v20, v5, 4, v6")
        E("s_lshl_b32 s4, s9, 5")
        E("v_lshlrev_b32 v5, 3, v4")
        E("v_add_u32 v5, s4, v5")
        E("v_lshrrev_b32 v6, 2, v3")
        E("v_add_u32 v5, v5, v6")
        E("v_mul_u32_u24 v5, 192, v5")
        E("v_and_b32 v7, 3, v3")
        E("v_lshl_add_u32 v5, v7, 3, v5")
        E("v_add_u32 v5, 16384, v5")
        E("v_and_b32 v8, 1, v4")
        E("v_lshlrev_b32 v8, 5, v8")
        E("v_add_u32 v21, v5, v8")
        E("v_sub_u32 v22, v5, v8")
        E("s_mul_i32 s4, s9, 20")
        E("v_lshlrev_b32 v5, 2, v4")
        E("v_add_u32 v5, s4, v5")
        E("v_add_u32 v5, v5, v6")
        E("v_mul_u32_u24 v5, 192, v5")
        E("v_lshl_add_u32 v5, v7, 3, v5")
        E("v_add_u32 v8, s9, v4")
        E("v_and_b32 v8, 1, v8")
        E("v_lshlrev_b32 v8, 5, v8")
        E("v_add_u32 v23, v5, v8")
        E("v_sub_u32 v24, v5, v8")
        E("s_add_u32 s4, s4, 16")
        E("v_add_u32 v5, s4, v6")
        E("v_mul_u32_u24 v5, 192, v5")
        E("v_lshl_add_u32 v5, v7, 3, v5")
        E("s_and_b32 s4, s9, 1")
        E("s_lshl_b32 s4, s4, 5")
        E("v_add_u32 v25, s4, v5")
        E("v_subrev_u32 v26, s4, v5")
        E("v_lshlrev_b32 v5, 4, v4")
        E("v_lshl_add_u32 v27, v3, 6, v5")
        E("v_add_u32 v6, 16, v3")
        E("v_mov_b32 v7, 31")
        E("v_cmp_gt_u32 vcc, 4, v3")
        nop(2)
        E("v_cndmask_b32 v6, v7, v6, vcc")
        E("v_lshl_add_u32 v28, v6, 6, v5")
        E(f"v_add_u32 v29, {20*64}, v5")
        E("s_lshl_b32 s4, s6, 6")
        E(f"s_add_u32 s4, s4, {32*mh}")
        E("v_add_u32 v6, s4, v3")
        E("v_mul_u32_u24 v6, 1280, v6")
        E("v_add_u32 v19, v6, v5")
        E("v_cmp_gt_u32 vcc, 3, v4")
        nop(2)
        E("v_cndmask_b32 v19, v9, v19, vcc")
        srd(48, P_WS, KVT_SIZE, WS_KVT)
        srd(52, P_WS, S * D * 2, WS_PQ)
        E("s_lshl_b32 s14, s9, 11")
        E("s_mul_i32 s15, s9, 40")
        for r in range(40):
            E(f"v_mov_b32 v{ACCB+r}, 0")

        def oloads(hi):
            hb = 8 * (hi >> 1) + 4 * (hi & 1)
            E(f"s_add_u32 s4, s14, {hb*2048}")
            E(f"s_add_u32 s5, s15, {hb*40}")
            E(f"s_add_u32 s13, s15, {hb*40 + 16*1280}")
            for n, a in enumerate((27, 28, 29)):
                E(f"buffer_load_dwordx4 v[{KVF+4*n}:{KVF+4*n+3}], v{a}, s[48:51], s4 offen")
                vq.issue(("o", hi))
            E(f"buffer_load_dwordx4 v[{PQF}:{PQF+3}], v19, s[52:55], s5 offen")
            vq.issue(("o", hi))
            E(f"buffer_load_dwordx4 v[{PQF+4}:{PQF+7}], v19, s[52:55], s13 offen")
            vq.issue(("o", hi))

        def opart(hi):
            vq.wait(("o", hi))
            for jj in range(2):
                for n in range(3):
                    r = RR + jj * 12 + n * 4
                    E(f"v_mfma_f32_16x16x32_bf16 v[{r}:{r+3}], v[{KVF+4*n}:{KVF+4*n+3}], v[{PQF+4*jj}:{PQF+4*jj+3}], 0")
            if hi < 7:
                oloads(hi + 1)
            else:
                nop(8)
            nop(4)
            z0, z1 = RR + 8, RR + 20
            bf16r2(z0, z1, 6)
            E(f"v_add_f32 v{z0}, {hex(EPS6)}, v{z0}")
            E(f"v_add_f32 v{z1}, {hex(EPS6)}, v{z1}")
            bf16r2(z0, z1, 6)
            E(f"v_rcp_f32 v{z0}, v{z0}")
            E(f"v_rcp_f32 v{z1}, v{z1}")
            for jj in range(2):
                z = (z0, z1)[jj]
                for p in range(4):
                    a = RR + jj * 12 + 2 * p
                    bf16r2(a, a + 1, 6 + (p & 1))
                    E(f"v_pk_mul_f32 v[{a}:{a+1}], v[{a}:{a+1}], v[{z}:{z+1}] op_sel:[0,0] op_sel_hi:[1,0]")
                    E(f"v_cvt_pk_bf16_f32 v{OF + (hi*2+jj)*4 + p}, v{a}, v{a+1}")

        steps = []
        for st in range(ND):
            steps.append((st, "d", 0))
        for s in range(NW):
            steps.append((ND + s, "w", 0))
            steps.append((ND + s, "w", 1))

        def reads(n):
            st, kind, sub = steps[n]
            kk = n & 1
            slot = (st % RING2) * STG2
            L = []

            def adr(reg, off):
                if off < 65536:
                    return f"v{reg} offset:{off}"
                tmp = {20: 232, 21: 233, 22: 234, 23: 235, 24: 236, 25: 237, 26: 238}[reg]
                return f"v{tmp} offset:{off - 65536*(off//65536)}"
            hi = slot // 65536
            regs = (20, 21, 22) if kind == "d" else (23, 24, 25, 26)
            acc = []
            if kind == "d":
                for jj in range(2):
                    acc.append(("b128", XF[kk] + 4 * jj, 20, slot + 4096 * jj))
                for t in range(5):
                    r = WF[kk] + 4 * t
                    acc.append(("tr", r, 21 + (t & 1), slot + t * 32))
                    acc.append(("tr", r + 2, 21 + (t & 1), slot + t * 32 + 768))
            else:
                for t in range(5):
                    r = WF[kk] + 4 * t
                    acc.append(("tr", r, 23 + (t & 1), slot + sub * 80 * 192 + t * 32))
                    acc.append(("tr", r + 2, 25 + (t & 1), slot + sub * 80 * 192 + t * 32))
            need = {}
            for kind2, r, reg, off in acc:
                need.setdefault(reg, []).append(off)
            basemap = {}
            for reg, offs in need.items():
                lo = min(offs)
                b = (lo // 32768) * 32768
                if b:
                    tmp = {20: 238, 21: 239, 22: 5, 23: 238, 24: 239, 25: 5, 26: 8}[reg]
                    L.append(f"v_add_u32 v{tmp}, {b}, v{reg}")
                    basemap[reg] = (tmp, b)
                else:
                    basemap[reg] = (reg, 0)
            for kind2, r, reg, off in acc:
                rg, b = basemap[reg]
                assert 0 <= off - b < 65536
                if kind2 == "b128":
                    L.append(f"ds_read_b128 v[{r}:{r+3}], v{rg} offset:{off-b}")
                else:
                    L.append(f"ds_read_b64_tr_b16 v[{r}:{r+1}], v{rg} offset:{off-b}")
            return L

        def mfmas(n):
            st, kind, sub = steps[n]
            kk = n & 1
            L = []
            for t in range(5):
                for jj in range(2):
                    w = WF[kk] + 4 * t
                    if kind == "d":
                        a = ACCB + (jj * 5 + t) * 4
                        x = XF[kk] + 4 * jj
                        L.append(f"v_mfma_f32_16x16x32_bf16 v[{a}:{a+3}], v[{w}:{w+3}], v[{x}:{x+3}], v[{a}:{a+3}]")
                    else:
                        a = ACCS + (jj * 5 + t) * 4
                        hi = (st - ND) * 2 + sub
                        x = OF + (hi * 2 + jj) * 4
                        c = "0" if hi == 0 else f"v[{a}:{a+3}]"
                        L.append(f"v_mfma_f32_16x16x32_bf16 v[{a}:{a+3}], v[{w}:{w+3}], v[{x}:{x+3}], {c}")
            return L

        oloads(0)
        vq.wait(("d", 0))
        E("s_barrier")
        stamp(2)
        dma(3)
        for l in reads(0):
            E(l)
        osched = {2: 0, 3: 1, 4: 2, 5: 3, 6: 4, 7: 5, 8: 6, 9: 7}
        NSTEP = len(steps)
        for n in range(NSTEP):
            st = steps[n][0]
            nxt = steps[n + 1][0] if n + 1 < NSTEP else None
            newstage = nxt is not None and nxt != st
            if newstage:
                vq.wait(("d", nxt), "lgkmcnt(0)")
                E("s_barrier")
            else:
                E("s_waitcnt lgkmcnt(0)")
            dst = nxt + 3 if newstage else None
            if dst is not None and dst >= ND + NW:
                dst = None
            if early and dst is not None:
                dma(dst)
            tail = (st == ND - 1)
            if tail:
                E("s_cmp_ge_u32 s9, 2")
                lab = f"{name}_skip{mh}"
                if n + 1 < NSTEP:
                    for l in reads(n + 1):
                        E(l)
                E(f"s_cbranch_scc1 {lab}")
                for l in mfmas(n):
                    E(l)
                E(f"{lab}:")
            else:
                interleave(mfmas(n) if "tnomfma" not in XP else [], reads(n + 1) if (n + 1 < NSTEP and "tnoread" not in XP) else [])
            if (not early) and dst is not None:
                dma(dst)
            if n in osched and "tnoo" not in XP:
                opart(osched[n])
        nop(10)
        stamp(3)
        E("s_barrier")
        E("v_lshlrev_b32 v5, 4, v2")
        E("s_mul_i32 s4, s8, 20480")
        E("v_add_u32 v6, s4, v5")
        for T in range(10):
            E(f"ds_write_b128 v6, v[{ACCB+4*T}:{ACCB+4*T+3}] offset:{T*2048}")
            E(f"ds_write_b128 v6, v[{ACCS+4*T}:{ACCS+4*T+3}] offset:{T*2048+1024}")
        srd(44, P_X, S * D * 2)
        srd(48, P_OUT, S * D * 2)
        E("s_lshl_b32 s4, s6, 6")
        E(f"s_add_u32 s4, s4, {32*mh}")
        E("v_add_u32 v7, s4, v3")
        E("v_mul_u32_u24 v7, 1280, v7")
        E("v_lshl_add_u32 v7, v4, 3, v7")
        E("s_mul_i32 s4, s7, 160")
        E("v_add_u32 v7, s4, v7")
        for nn in range(3):
            E(f"s_add_u32 s4, s9, {4*nn}")
            E("s_lshl_b32 s5, s4, 5")
            E(f"s_add_u32 s13, s5, {16*1280 - 160}")
            E("s_cmp_ge_u32 s4, 5")
            E(f"s_cselect_b32 s{56+nn}, s13, s5")
        E("s_mov_b32 s59, 0x7ff00000")
        E("s_cmp_ge_u32 s9, 2")
        E("s_cselect_b32 s58, s59, s58")
        for nn in range(3):
            E(f"buffer_load_dwordx2 v[{110+2*nn}:{111+2*nn}], v7, s[44:47], s{56+nn} offen")
        E("s_waitcnt lgkmcnt(0)")
        E("s_barrier")
        E("s_lshl_b32 s4, s9, 11")
        E(f"s_add_u32 s4, s4, {mh*4*20480}")
        E("v_add_u32 v6, s4, v5")
        E("v_add_u32 v8, 40960, v6")
        for nn in range(3):
            for src in range(4):
                for gm in range(2):
                    r = 120 + ((nn * 4 + src) * 2 + gm) * 4
                    off = (src & 1) * 20480 + nn * 4 * 2048 + gm * 1024
                    E(f"ds_read_b128 v[{r}:{r+3}], v{6 if src < 2 else 8} offset:{off}")
        E("s_waitcnt lgkmcnt(0)")
        E(f"s_mov_b32 s50, {hex(LOG2E ^ 0x80000000)}")
        E("s_waitcnt vmcnt(0)")
        for nn in range(3):
            lab = f"{name}_e{mh}_{nn}"
            if nn == 2:
                E("s_cmp_ge_u32 s9, 2")
                E(f"s_cbranch_scc1 {lab}")
            bb = 120 + (nn * 8) * 4
            ss = bb + 4
            for src in range(1, 4):
                for r in range(4):
                    E(f"v_add_f32 v{bb+r}, v{bb+r}, v{bb+8*src+r}")
                    E(f"v_add_f32 v{ss+r}, v{ss+r}, v{ss+8*src+r}")
            for p in range(2):
                x, y = bb + 2 * p, bb + 2 * p + 1
                a, b = ss + 2 * p, ss + 2 * p + 1
                bf16r2(x, y, 6)
                for r, t in ((x, 8), (y, 9)):
                    E(f"v_mul_f32 v{t}, s50, v{r}")
                    E(f"v_exp_f32 v{t}, v{t}")
                bf16r2(a, b, 6)
                for r, t in ((x, 8), (y, 9)):
                    E(f"v_add_f32 v{t}, 1.0, v{t}")
                    E(f"v_rcp_f32 v{t}, v{t}")
                nop(1)
                E(f"v_mul_f32 v{x}, v{x}, v8")
                E(f"v_mul_f32 v{y}, v{y}, v9")
                bf16r2(x, y, 6)
                E(f"v_mul_f32 v{a}, v{a}, v{x}")
                E(f"v_mul_f32 v{b}, v{b}, v{y}")
                bf16r2(a, b, 6)
                xq = 110 + 2 * nn + p
                E(f"v_lshlrev_b32 v8, 16, v{xq}")
                E(f"v_and_b32 v9, 0xffff0000, v{xq}")
                E(f"v_add_f32 v{a}, v{a}, v8")
                E(f"v_add_f32 v{b}, v{b}, v9")
                E(f"v_cvt_pk_bf16_f32 v{116+p}, v{a}, v{b}")
            E(f"buffer_store_dwordx2 v[116:117], v7, s[48:51], s{56+nn} offen")
            nop(1)
            if nn == 2:
                E(f"{lab}:")
        if mh == 0:
            E(f"s_branch {name}_done")
    E(f"{name}_done:")
    stamp(4)
    stamp_flush(5)
    E(f"{name}_exit:")
    E("s_endpgm")
    return name, kernel_desc(name, NV)


def main():
    hdr = open("cdna_kernels/%s.s.ref" % NAME).read().split("\n")
    top = [l for l in hdr if l.startswith(";") and "@launch" not in l]
    launches = [
        ("ln_kernel", 512, 256, 0),
        ("g1_kernel", 240, 512, RING1 * STG1),
        ("g2_kernel", 256, 512, RING2 * STG2),
    ]
    top += [f"; @launch kernel={k} grid=({g},1,1) block=({b},1,1) lds={l}" for k, g, b, l in launches]
    E('.amdgcn_target "amdgcn-amd-amdhsa--gfx950"')
    E(".text")
    descs = []
    descs.append(gen_ln())
    descs.append(gen_g1())
    descs.append(gen_tail())
    E('.section .rodata,"a"')
    body = "\n".join(top) + "\n" + "\n".join(out) + "\n" + "".join(d for _, d in descs)
    open("cdna_kernels/%s.s" % NAME, "w").write(body)


if __name__ == "__main__":
    main()
```

```python
import os

NAME = "recurrent_scan__linear_attn_block__glu_gated_glu__prompt"
S, D, H, DH, F = 2048, 640, 32, 20, 1728

WS_XN = 0
WS_PQ = WS_XN + S * D * 2
PQ_SIZE = 128 * 32 * 768
WS_H = WS_PQ + PQ_SIZE
WS_KVA = WS_H + S * F * 2
KVA_SIZE = 32 * 4096
WS_W1P = WS_KVA + KVA_SIZE
W1P_SIZE = 336 * 20480
WS_WDP = WS_W1P + W1P_SIZE
WDP_SIZE = 40 * 57344
WS_WOP = WS_WDP + WDP_SIZE
WOP_SIZE = 40 * 20480
WS_END = WS_WOP + WOP_SIZE

LOG2E = 0x3fb8aa3b
EPS6 = 0x358637bd
EPS5 = 0x3727c5ac
OOB = 0x7ff00000

out = []
STAMP = os.environ.get("STAMP") is not None
XP = os.environ.get("XP", "").split(",")


def E(s=""):
    out.append("    " + s if s and not s.endswith(":") else s)


def nop(n):
    while n > 0:
        k = min(n, 16)
        E(f"s_nop {k-1}")
        n -= k


def load_ptrs():
    E("s_load_dwordx16 s[16:31], s[0:1], 0")
    E("s_load_dwordx4 s[32:35], s[0:1], 64")


def srd(d, base, nbytes, off=0):
    if off:
        E(f"s_add_u32 s{d}, s{base}, {off}")
        E(f"s_addc_u32 s{d+1}, s{base+1}, 0")
    else:
        E(f"s_mov_b32 s{d}, s{base}")
        E(f"s_mov_b32 s{d+1}, s{base+1}")
    E(f"s_and_b32 s{d+1}, s{d+1}, 0xffff")
    E(f"s_mov_b32 s{d+2}, {nbytes}")
    E(f"s_mov_b32 s{d+3}, 0x00020000")


P_X, P_WQKV, P_WO, P_WG, P_WU, P_WD, P_OUT, P_WS = 16, 18, 20, 24, 26, 28, 30, 34


def bf16r2(a, b, tmp):
    E(f"v_cvt_pk_bf16_f32 v{tmp}, v{a}, v{b}")
    E(f"v_lshlrev_b32 v{a}, 16, v{tmp}")
    E(f"v_and_b32 v{b}, 0xffff0000, v{tmp}")


def stamp(i):
    if not STAMP:
        return
    E("s_memtime s[68:69]")
    E("s_waitcnt lgkmcnt(0)")
    E(f"s_mov_b32 s{70+i}, s68")


def stamp_flush(n, wave_sreg=8, wsel=0):
    if not STAMP:
        return
    lab = f"stamp_skip{len(out)}"
    E(f"s_cmp_lg_u32 s{wave_sreg}, {wsel}")
    E(f"s_cbranch_scc1 {lab}")
    E("s_and_b32 s64, s2, 31")
    E("s_lshr_b32 s65, s2, 5")
    E("s_cmp_lg_u32 s64, s65")
    E(f"s_cbranch_scc1 {lab}")
    E("s_lshl_b32 s64, s64, 5")
    srd(80, 32, 256)
    for i in range(n):
        E(f"v_mov_b32 v1, s{70+i}")
        E(f"v_mov_b32 v0, {4*i}")
        E("buffer_store_dword v1, v0, s[80:83], s64 offen")
    E(f"{lab}:")


def kernel_begin(name):
    E(f".globl {name}")
    E(".p2align 8")
    E(f".type {name},@function")
    E(f"{name}:")


def kernel_desc(name, nvgpr, nagpr=0, nsgpr=100):
    acc = (nvgpr + 3) // 4 * 4
    nfv = acc + nagpr if nagpr else nvgpr
    return f""".p2align 6
.amdhsa_kernel {name}
  .amdhsa_next_free_vgpr {nfv}
  .amdhsa_next_free_sgpr {nsgpr}
  .amdhsa_accum_offset {acc}
  .amdhsa_group_segment_fixed_size 0
  .amdhsa_kernarg_size 80
  .amdhsa_user_sgpr_count 2
  .amdhsa_user_sgpr_kernarg_segment_ptr 1
  .amdhsa_system_sgpr_workgroup_id_x 1
.end_amdhsa_kernel
"""


def wave_sum(v, t):
    for off in (0x041F, 0x081F, 0x101F, 0x201F, 0x401F):
        E(f"ds_swizzle_b32 v{t}, v{v} offset:{off}")
        E("s_waitcnt lgkmcnt(0)")
        E(f"v_add_f32 v{v}, v{v}, v{t}")
    nop(1)
    E(f"v_readlane_b32 s4, v{v}, 32")
    E(f"v_readlane_b32 s5, v{v}, 0")
    nop(2)
    E(f"v_mov_b32 v{v}, s4")
    E(f"v_add_f32 v{v}, s5, v{v}")


K0_W1, K0_WD, K0_WO, K0_N = 512, 932, 1072, 1112


def gen_k0():
    name = "k0_kernel"
    kernel_begin(name)
    E(f"s_cmp_ge_u32 s2, {K0_N}")
    E("s_cbranch_scc1 k0_done")
    load_ptrs()
    E("v_lshrrev_b32 v1, 6, v0")
    E("v_and_b32 v2, 63, v0")
    E("v_readfirstlane_b32 s8, v1")
    E(f"s_cmp_ge_u32 s2, {K0_W1}")
    E("s_cbranch_scc1 k0_pack")
    E("v_lshl_add_u32 v1, s2, 2, v1")
    E("v_mul_u32_u24 v1, 1280, v1")
    E("v_lshl_add_u32 v1, v2, 2, v1")
    E("s_waitcnt lgkmcnt(0)")
    srd(36, P_X, S * D * 2)
    srd(40, P_WS, S * D * 2, WS_XN)
    for j in range(5):
        E(f"buffer_load_dword v{10+j}, v1, s[36:39], 0 offen offset:{256*j}")
    E("v_lshrrev_b32 v30, 4, v2")
    E("v_lshlrev_b32 v30, 10, v30")
    E("v_bfe_u32 v31, v2, 2, 2")
    E("v_lshl_add_u32 v30, v31, 8, v30")
    E("v_and_b32 v31, 3, v2")
    E("v_lshl_add_u32 v30, v31, 2, v30")
    E("s_lshr_b32 s4, s2, 2")
    E("s_mul_i32 s4, s4, 20480")
    E("s_and_b32 s5, s2, 3")
    E("s_lshl_b32 s5, s5, 2")
    E("s_add_u32 s5, s5, s8")
    E("s_lshl_b32 s5, s5, 4")
    E("s_add_u32 s4, s4, s5")
    E("v_add_u32 v30, s4, v30")
    E("s_cmp_ge_u32 s2, 128")
    E("s_cbranch_scc1 ln_nz")
    srd(44, P_WS, KVA_SIZE, WS_KVA)
    E("v_lshlrev_b32 v32, 2, v0")
    E("v_mov_b32 v31, 0")
    E("s_lshl_b32 s4, s2, 10")
    E("buffer_store_dword v31, v32, s[44:47], s4 offen")
    E("ln_nz:")
    E("s_waitcnt vmcnt(0)")
    for j in range(5):
        E(f"v_lshlrev_b32 v{20+2*j}, 16, v{10+j}")
        E(f"v_and_b32 v{21+2*j}, 0xffff0000, v{10+j}")
    E("v_add_f32 v3, v20, v21")
    for j in range(2, 10):
        E(f"v_add_f32 v3, v3, v{20+j}")
    wave_sum(3, 4)
    E("v_mul_f32 v3, 0x3acccccd, v3")
    E("v_mov_b32 v5, 0")
    for j in range(10):
        E(f"v_sub_f32 v6, v{20+j}, v3")
        E("v_fmac_f32 v5, v6, v6")
    wave_sum(5, 6)
    E("v_mul_f32 v5, 0x3acccccd, v5")
    bf16r2(3, 5, 7)
    E(f"v_add_f32 v5, {hex(EPS5)}, v5")
    E("v_mov_b32 v6, 0")
    bf16r2(5, 6, 7)
    E("v_sqrt_f32 v5, v5")
    nop(1)
    bf16r2(5, 6, 7)
    E("v_rcp_f32 v8, v5")
    nop(1)
    for j in range(0, 10, 2):
        a, b = 20 + j, 21 + j
        E(f"v_sub_f32 v{a}, v{a}, v3")
        E(f"v_sub_f32 v{b}, v{b}, v3")
        bf16r2(a, b, 7)
        for r in (a, b):
            E(f"v_mul_f32 v9, v{r}, v8")
            E(f"v_fma_f32 v6, -v9, v5, v{r}")
            E(f"v_fma_f32 v{r}, v6, v8, v9")
        E(f"v_cvt_pk_bf16_f32 v{10+j//2}, v{a}, v{b}")
    for j in range(5):
        E(f"s_mov_b32 s4, {4096*j}")
        E(f"buffer_store_dword v{10+j}, v30, s[40:43], s4 offen")
    E("s_branch k0_done")

    E("k0_pack:")
    E("v_and_b32 v3, 15, v2")
    E("v_lshrrev_b32 v4, 4, v2")
    E("v_lshlrev_b32 v1, 4, v2")
    E("s_waitcnt lgkmcnt(0)")
    E(f"s_cmp_ge_u32 s2, {K0_WO}")
    E("s_cbranch_scc1 k0_wo")
    E(f"s_cmp_ge_u32 s2, {K0_WD}")
    E("s_cbranch_scc1 k0_wd")
    E(f"s_sub_u32 s4, s2, {K0_W1}")
    E("s_mul_i32 s5, s4, 781")
    E("s_lshr_b32 s5, s5, 16")
    E("s_mul_i32 s6, s5, 84")
    E("s_sub_u32 s6, s4, s6")
    E("s_lshl_b32 s6, s6, 2")
    E("s_add_u32 s6, s6, s8")
    E("s_mul_i32 s7, s6, 20")
    E("s_lshl_b32 s9, s5, 2")
    E("s_add_u32 s7, s7, s9")
    E("s_lshl_b32 s7, s7, 10")
    srd(40, P_WS, W1P_SIZE, WS_W1P)
    E("s_cmp_lt_u32 s6, 120")
    E("s_cbranch_scc0 k0_w1g")
    srd(36, P_WQKV, D * 3 * D * 2)
    E("s_mov_b32 s10, 3840")
    E("s_branch k0_pk")
    E("k0_w1g:")
    E("s_cmp_lt_u32 s6, 228")
    E("s_cbranch_scc0 k0_w1u")
    srd(36, P_WG, D * F * 2)
    E("s_mov_b32 s10, 3456")
    E("s_sub_u32 s6, s6, 120")
    E("s_branch k0_pk")
    E("k0_w1u:")
    srd(36, P_WU, D * F * 2)
    E("s_mov_b32 s10, 3456")
    E("s_sub_u32 s6, s6, 228")
    E("s_branch k0_pk")
    E("k0_wd:")
    E(f"s_sub_u32 s4, s2, {K0_WD}")
    E("s_mul_i32 s5, s4, 6554")
    E("s_lshr_b32 s5, s5, 16")
    E("s_mul_i32 s6, s5, 10")
    E("s_sub_u32 s6, s4, s6")
    E("s_lshl_b32 s6, s6, 2")
    E("s_add_u32 s6, s6, s8")
    E("s_mul_i32 s7, s6, 56")
    E("s_lshl_b32 s9, s5, 2")
    E("s_add_u32 s7, s7, s9")
    E("s_lshl_b32 s7, s7, 10")
    srd(40, P_WS, WDP_SIZE, WS_WDP)
    srd(36, P_WD, F * D * 2)
    E("s_mov_b32 s10, 1280")
    E("k0_pk:")
    E("s_lshl_b32 s6, s6, 5")
    E("s_lshl_b32 s5, s5, 7")
    E("s_mul_i32 s5, s5, s10")
    E("s_add_u32 s6, s6, s5")
    E("s_lshl_b32 s11, s10, 3")
    E("s_lshl_b32 s12, s10, 5")
    E("v_mul_lo_u32 v5, v4, s11")
    E("v_lshl_add_u32 v5, v3, 1, v5")
    for j in range(1, 8):
        E(f"v_add_u32 v{5+j}, s10, v{4+j}")
    for q in range(4):
        for j in range(8):
            E(f"buffer_load_ushort v{40+8*q+j}, v{5+j}, s[36:39], s6 offen")
        if q < 3:
            E("s_add_u32 s6, s6, s12")
    E("s_waitcnt vmcnt(0)")
    for r in range(16):
        E(f"v_lshl_or_b32 v{20+r}, v{41+2*r}, 16, v{40+2*r}")
    for q in range(4):
        E(f"buffer_store_dwordx4 v[{20+4*q}:{23+4*q}], v1, s[40:43], s7 offen offset:{1024*q}")
    E("s_branch k0_done")
    E("k0_wo:")
    E(f"s_sub_u32 s4, s2, {K0_WO}")
    E("s_mul_i32 s5, s4, 6554")
    E("s_lshr_b32 s5, s5, 16")
    E("s_mul_i32 s6, s5, 10")
    E("s_sub_u32 s6, s4, s6")
    E("s_lshl_b32 s6, s6, 2")
    E("s_add_u32 s6, s6, s8")
    E("s_lshl_b32 s7, s6, 2")
    E("s_add_u32 s7, s7, s5")
    E("s_mul_i32 s7, s7, 5120")
    srd(40, P_WS, WOP_SIZE, WS_WOP)
    srd(36, P_WO, D * D * 2)
    E("s_lshl_b32 s6, s6, 5")
    E(f"s_mul_i32 s5, s5, {160*1280}")
    E("s_add_u32 s6, s6, s5")
    E("v_mul_u32_u24 v5, 5120, v4")
    E("v_lshl_add_u32 v5, v3, 1, v5")
    E("v_mul_u32_u24 v6, 25600, v4")
    E("v_lshl_add_u32 v6, v3, 1, v6")
    for j in range(5):
        for s in range(8):
            if j < 4:
                c = (40 * j + 20 * (s >> 2) + (s & 3)) * 1280
                a = 5
            else:
                c = (80 * (s >> 2) + 16 + (s & 3)) * 1280
                a = 6
            E(f"s_add_u32 s4, s6, {c}")
            E(f"buffer_load_ushort v{40+8*j+s}, v{a}, s[36:39], s4 offen")
    E("s_add_u32 s9, s7, 4096")
    E("s_waitcnt vmcnt(0)")
    for r in range(20):
        E(f"v_lshl_or_b32 v{20+r}, v{41+2*r}, 16, v{40+2*r}")
    for j in range(5):
        if j < 4:
            E(f"buffer_store_dwordx4 v[{20+4*j}:{23+4*j}], v1, s[40:43], s7 offen offset:{1024*j}")
        else:
            E(f"buffer_store_dwordx4 v[{20+4*j}:{23+4*j}], v1, s[40:43], s9 offen")
    E("k0_done:")
    E("s_endpgm")
    return name, kernel_desc(name, 80)


STG1 = 28672
RING1 = 5


def interleave(main, fill, start=0, every=1):
    fi = 0
    for n, m in enumerate(main):
        E(m)
        if n >= start and (n - start) % every == 0 and fi < len(fill):
            E(fill[fi])
            fi += 1
    while fi < len(fill):
        E(fill[fi])
        fi += 1


def gen_g1():
    name = "g1_kernel"
    kernel_begin(name)
    NWG = 240
    E(f"s_cmp_ge_u32 s2, {NWG}")
    E("s_cbranch_scc1 g1_exit")
    load_ptrs()
    E("s_and_b32 s6, s2, 7")
    E("s_mul_i32 s6, s6, 30")
    E("s_lshr_b32 s7, s2, 3")
    E("s_add_u32 s7, s7, s6")
    E("s_and_b32 s6, s7, 7")
    E("s_lshr_b32 s7, s7, 3")
    E("v_lshrrev_b32 v1, 6, v0")
    E("v_and_b32 v2, 63, v0")
    E("v_readfirstlane_b32 s8, v1")
    E("v_and_b32 v3, 15, v2")
    E("v_lshrrev_b32 v4, 4, v2")
    E("v_lshlrev_b32 v1, 4, v2")
    E("s_lshr_b32 s11, s8, 1")
    E("s_lshr_b32 s12, s8, 2")
    E("s_xor_b32 s12, s12, s8")
    E("s_and_b32 s12, s12, 1")
    E("s_lshl_b32 s13, s11, 6")
    E("s_mov_b32 s60, 0")
    E("s_mov_b32 s61, 0")
    E("s_mov_b32 s47, 1024")
    E("s_mul_i32 s63, s6, 5")
    E("s_lshr_b32 s63, s63, 1")
    E("s_and_b32 s4, s7, 3")
    E("s_mul_i32 s4, s4, 5")
    E("s_add_u32 s63, s63, s4")
    E("s_sub_u32 s4, s63, 20")
    E("s_cmp_ge_u32 s63, 20")
    E("s_cselect_b32 s63, s4, s63")
    if "rot" not in XP:
        E("s_mov_b32 s63, 0")
    E("s_waitcnt lgkmcnt(0)")
    stamp(0)
    E("s_cmp_lt_u32 s7, 12")
    E("s_cbranch_scc1 g1_qkv")
    E("s_branch g1_gu")

    for typ in ("qkv", "gu"):
        E(f"g1_{typ}:")
        gu = typ == "gu"
        NT = 6 if gu else 5
        ACC = 100
        XF = [30, 46]
        WF = [200, 224]

        for role in ("a", "b"):
            P = 4 if role == "a" else 3
            if role == "a":
                E("s_cmp_lt_u32 s8, 4")
                E(f"s_cbranch_scc0 g1_{typ}_b")
                srd(36, P_WS, S * D * 2, WS_XN)
                E(f"s_mul_i32 s9, s8, {4*20480}")
                E("v_add_u32 v10, s9, v1")
                for i in range(1, 4):
                    E(f"v_add_u32 v{10+i}, {20480*i}, v10")
                E("s_mul_i32 s10, s6, 327680")
                E("s_lshl_b32 s4, s63, 10")
                E("s_add_u32 s10, s10, s4")
                E("s_lshl_b32 s44, s8, 12")
            else:
                E(f"g1_{typ}_b:")
                srd(36, P_WS, W1P_SIZE, WS_W1P)
                E("s_sub_u32 s14, s8, 4")
                E("s_mul_i32 s14, s14, 3")
                if gu:
                    E("s_sub_u32 s15, s7, 12")
                    E("s_mul_i32 s15, s15, 6")
                    E("s_add_u32 s15, s15, 120")
                    for i in range(3):
                        E(f"s_add_u32 s4, s14, {i}")
                        E("s_add_u32 s5, s15, s4")
                        E("s_add_u32 s9, s5, 102")
                        E("s_cmp_lt_u32 s4, 6")
                        E("s_cselect_b32 s5, s5, s9")
                        E("s_mul_i32 s5, s5, 20480")
                        E(f"v_add_u32 v{10+i}, s5, v1")
                else:
                    E("s_mul_i32 s15, s7, 5")
                    E("s_add_u32 s15, s15, 40")
                    E("s_mov_b32 s9, 35")
                    E("s_sub_u32 s4, s7, 8")
                    E("s_mul_i32 s4, s4, 10")
                    E("s_cmp_lt_u32 s7, 8")
                    E("s_cselect_b32 s15, s15, s4")
                    E("s_cselect_b32 s9, s9, 0")
                    for i in range(3):
                        E(f"s_add_u32 s4, s14, {i}")
                        E("s_add_u32 s5, s15, s4")
                        E("s_add_u32 s45, s5, s9")
                        E("s_cmp_lt_u32 s4, 5")
                        E("s_cselect_b32 s5, s5, s45")
                        E("s_mul_i32 s5, s5, 20480")
                        E("s_cmp_lt_u32 s4, 10")
                        E(f"s_cselect_b32 s5, s5, {hex(OOB)}")
                        E(f"v_add_u32 v{10+i}, s5, v1")
                E("s_lshl_b32 s10, s63, 10")
                E("s_lshl_b32 s44, s14, 10")
                E("s_add_u32 s44, s44, 16384")

            def dma():
                E("s_add_u32 s4, s44, s61")
                for i in range(P):
                    if i:
                        E("s_add_u32 s4, s4, 1024")
                    E("s_mov_b32 m0, s4")
                    nop(1)
                    E(f"buffer_load_dwordx4 v{10+i}, s[36:39], s10 offen lds")
                E("s_add_u32 s63, s63, 1")
                E("s_cmp_eq_u32 s63, 20")
                E(f"s_cselect_b32 s4, {-19*1024 & 0xffffffff}, s47")
                E("s_cselect_b32 s63, 0, s63")
                E("s_add_u32 s10, s10, s4")
                E(f"s_add_u32 s61, s61, {STG1}")
                E(f"s_cmp_eq_u32 s61, {RING1*STG1}")
                E("s_cselect_b32 s61, 0, s61")

            for st in range(RING1 - 1):
                dma()
            stamp(1)
            E("s_lshl_b32 s4, s11, 12")
            E("v_add_u32 v20, s4, v1")
            E(f"s_mul_i32 s4, s12, {3072 if gu else 5120}")
            E("s_add_u32 s4, s4, 16384")
            E("v_add_u32 v22, s4, v1")
            if gu:
                toff = [t * 1024 for t in range(3)] + [6144 + t * 1024 for t in range(3)]
            else:
                toff = [t * 1024 for t in range(5)]
            for r in range(NT * 16):
                E(f"v_mov_b32 v{ACC+r}, 0")

            def reads(kk):
                L = ["v_add_u32 v24, s60, v20", "v_add_u32 v25, s60, v22"]
                for j in range(4):
                    r = XF[kk] + 4 * j
                    L.append(f"ds_read_b128 v[{r}:{r+3}], v24 offset:{1024*j}")
                for t, imm in enumerate(toff):
                    r = WF[kk] + 4 * t
                    L.append(f"ds_read_b128 v[{r}:{r+3}], v25 offset:{imm}")
                L.append(f"s_add_u32 s60, s60, {STG1}")
                L.append(f"s_cmp_eq_u32 s60, {RING1*STG1}")
                L.append("s_cselect_b32 s60, 0, s60")
                return L

            def mfmas(kk):
                L = []
                for t in range(NT):
                    for j in range(4):
                        a = ACC + (t * 4 + j) * 4
                        w = WF[kk] + 4 * t
                        x = XF[kk] + 4 * j
                        L.append(f"v_mfma_f32_16x16x32_bf16 v[{a}:{a+3}], v[{w}:{w+3}], v[{x}:{x+3}], v[{a}:{a+3}]")
                return L

            NS = 20
            early = role == "a"
            E(f"s_waitcnt vmcnt({P*(RING1-3)})")
            E("s_barrier")
            stamp(2)
            for l in reads(0):
                E(l)
            E("s_waitcnt lgkmcnt(0)")

            def stage(kk, do_dma, do_reads, nwait):
                if early and do_dma:
                    dma()
                interleave(mfmas(kk), reads(kk ^ 1) if do_reads else [])
                if (not early) and do_dma:
                    dma()
                if nwait is not None:
                    E(f"s_waitcnt vmcnt({P*nwait}) lgkmcnt(0)")
                    E("s_barrier")

            M = 16
            E(f"s_mov_b32 s62, {M//2}")
            E(f"g1_{typ}_{role}_loop:")
            for u in range(2):
                stage(u, True, True, RING1 - 3)
            E("s_sub_u32 s62, s62, 1")
            E("s_cmp_lg_u32 s62, 0")
            E(f"s_cbranch_scc1 g1_{typ}_{role}_loop")
            for s in range(M, NS):
                rem = NS - (s + 3)
                stage(s & 1, False, s + 1 < NS, max(rem, 0) if s + 2 < NS else None)
                if s + 2 >= NS and s + 1 < NS:
                    E("s_waitcnt lgkmcnt(0)")
            if role == "a":
                E(f"s_branch g1_{typ}_epi")
        E(f"g1_{typ}_epi:")
        nop(10)
        stamp(3)
        E(f"s_mov_b32 s50, {hex(LOG2E ^ 0x80000000)}")
        E(f"s_mov_b32 s51, {hex(LOG2E ^ 0x80000000)}")
        E("s_mov_b32 s52, 1.0")
        E("s_mov_b32 s53, 1.0")
        if gu:
            srd(44, P_WS, S * F * 2, WS_H)
            E("v_lshrrev_b32 v6, 1, v4")
            E("v_lshlrev_b32 v5, 8, v6")
            E("v_lshl_add_u32 v5, v3, 4, v5")
            E("v_and_b32 v6, 1, v4")
            E("v_lshl_add_u32 v5, v6, 3, v5")
            E("s_lshl_b32 s4, s6, 2")
            E("s_add_u32 s4, s4, s11")
            E(f"s_mul_i32 s4, s4, {4*55296}")
            E("s_sub_u32 s15, s7, 12")
            E("s_mul_i32 s15, s15, 6")
            E("s_mul_i32 s5, s12, 3")
            E("s_add_u32 s15, s15, s5")
            E("s_lshl_b32 s15, s15, 9")
            E("s_add_u32 s4, s4, s15")
            for j in range(4):
                for t in range(3):
                    ga = ACC + (t * 4 + j) * 4
                    ua = ACC + ((t + 3) * 4 + j) * 4
                    for p in range(2):
                        a, b = ga + 2 * p, ga + 2 * p + 1
                        c, d = ua + 2 * p, ua + 2 * p + 1
                        bf16r2(a, b, 6)
                        E(f"v_pk_mul_f32 v[{a}:{b}], v[{a}:{b}], s[50:51]")
                        E(f"v_exp_f32 v{a}, v{a}")
                        E(f"v_exp_f32 v{b}, v{b}")
                        bf16r2(c, d, 7)
                        E(f"v_pk_add_f32 v[{a}:{b}], v[{a}:{b}], s[52:53]")
                        E(f"v_rcp_f32 v{a}, v{a}")
                        E(f"v_rcp_f32 v{b}, v{b}")
                        nop(1)
                        bf16r2(a, b, 6)
                        E(f"v_pk_mul_f32 v[{a}:{b}], v[{a}:{b}], v[{c}:{d}]")
                        E(f"v_cvt_pk_bf16_f32 v{8+p}, v{a}, v{b}")
                    E(f"buffer_store_dwordx2 v[8:9], v5, s[44:47], s4 offen offset:{t*512}")
                    nop(1)
                if j < 3:
                    E("s_add_u32 s4, s4, 55296")
            E("s_branch g1_done")
        else:
            E("s_lshl_b32 s4, s6, 8")
            E("s_add_u32 s4, s4, s13")
            E("v_add_u32 v5, s4, v3")
            E(f"s_mov_b32 s54, {hex(LOG2E)}")
            E(f"s_mov_b32 s55, {hex(LOG2E)}")
            E(f"s_mov_b32 s56, {hex(EPS6)}")
            E(f"s_mov_b32 s57, {hex(EPS6)}")

            def phi4(a):
                for p in range(2):
                    x, y = a + 2 * p, a + 2 * p + 1
                    bf16r2(x, y, 6)
                    E(f"v_pk_mul_f32 v[26:27], v[{x}:{y}], s[54:55]")
                    E("v_exp_f32 v26, v26")
                    E("v_exp_f32 v27, v27")
                    E(f"v_pk_add_f32 v[24:25], v[{x}:{y}], s[52:53]")
                    E(f"v_cmp_lt_f32 vcc, 0, v{x}")
                    E(f"v_cmp_lt_f32 s[58:59], 0, v{y}")
                    nop(1)
                    E("v_cndmask_b32 v24, v26, v24, vcc")
                    E("v_cndmask_b32 v25, v27, v25, s[58:59]")
                    bf16r2(24, 25, 6)
                    E("v_pk_add_f32 v[24:25], v[24:25], s[56:57]")
                    E(f"v_cvt_pk_bf16_f32 v{8+p}, v24, v25")

            def plain4(a):
                E(f"v_cvt_pk_bf16_f32 v8, v{a}, v{a+1}")
                E(f"v_cvt_pk_bf16_f32 v9, v{a+2}, v{a+3}")

            E("s_cmp_lt_u32 s7, 8")
            E("s_cbranch_scc1 g1_kv")
            srd(44, P_WS, PQ_SIZE, WS_PQ)
            E(f"v_mov_b32 v9, {hex(OOB)}")
            for t in range(5):
                E(f"v_add_u32 v5, {4*t}, v4")
                E("v_mul_u32_u24 v6, 52, v5")
                E("v_lshrrev_b32 v6, 8, v6")
                E("v_mul_u32_u24 v7, 5, v6")
                E("v_sub_u32 v5, v5, v7")
                E("v_mul_u32_u24 v6, 768, v6")
                E("v_lshl_add_u32 v6, v3, 4, v6")
                E("v_lshrrev_b32 v7, 1, v5")
                E("v_lshl_add_u32 v6, v7, 8, v6")
                E("v_and_b32 v7, 1, v5")
                E(f"v_lshl_add_u32 v{10+t}, v7, 3, v6")
                E("v_cmp_eq_u32 vcc, 4, v5")
                nop(2)
                E(f"v_cndmask_b32 v{15+t}, v9, v{10+t}, vcc")
            E("v_mov_b32 v20, 0")
            E("v_mov_b32 v21, 0")
            E("s_lshl_b32 s4, s6, 2")
            E("s_add_u32 s4, s4, s11")
            E("s_lshl_b32 s4, s4, 7")
            E("s_sub_u32 s5, s7, 8")
            E("s_lshl_b32 s5, s5, 3")
            E("s_add_u32 s4, s4, s5")
            E("s_lshl_b32 s5, s12, 2")
            E("s_add_u32 s4, s4, s5")
            E("s_mul_i32 s4, s4, 768")
            for j in range(4):
                for t in range(5):
                    phi4(ACC + (t * 4 + j) * 4)
                    E(f"buffer_store_dwordx2 v[8:9], v{10+t}, s[44:47], s4 offen")
                    if t > 0:
                        E(f"buffer_store_dwordx2 v[20:21], v{15+t}, s[44:47], s4 offen offset:8")
                    nop(1)
                if j < 3:
                    E("s_add_u32 s4, s4, 24576")
            E("s_branch g1_done")
            E("g1_kv:")
            E("s_barrier")
            E("v_add_u32 v5, s13, v3")
            E("v_mul_u32_u24 v5, 320, v5")
            E("v_lshl_add_u32 v5, v4, 3, v5")
            E("s_mul_i32 s4, s12, 160")
            E("v_add_u32 v5, s4, v5")
            E("s_cmp_eq_u32 s12, 0")
            E("s_cbranch_scc0 g1_kv_v")
            for j in range(4):
                for t in range(5):
                    phi4(ACC + (t * 4 + j) * 4)
                    E(f"ds_write_b64 v5, v[8:9] offset:{j*16*320 + t*32}")
                    nop(1)
            E("s_branch g1_kv_w")
            E("g1_kv_v:")
            for j in range(4):
                for t in range(5):
                    plain4(ACC + (t * 4 + j) * 4)
                    E(f"ds_write_b64 v5, v[8:9] offset:{j*16*320 + t*32}")
                    nop(1)
            E("g1_kv_w:")
            E("s_waitcnt lgkmcnt(0)")
            E("s_barrier")
            E("s_and_b32 s14, s8, 3")
            E("s_lshr_b32 s15, s8, 2")
            E("v_lshlrev_b32 v5, 3, v4")
            E("v_lshrrev_b32 v6, 2, v3")
            E("v_add_u32 v5, v5, v6")
            E("v_mul_u32_u24 v5, 320, v5")
            E("v_and_b32 v6, 3, v3")
            E("v_lshl_add_u32 v5, v6, 3, v5")
            E("s_mul_i32 s4, s14, 40")
            E("s_mul_i32 s5, s15, 40960")
            E("s_add_u32 s4, s4, s5")
            E("v_add_u32 v5, s4, v5")
            for r in range(24):
                E(f"v_mov_b32 v{100+r}, 0")
            for r in range(4):
                E(f"v_mov_b32 v{30+r}, 0x3f803f80")
            for ks in range(4):
                o = ks * 32 * 320
                b0 = 40 + 16 * (ks & 1)
                for dt in range(2):
                    E(f"ds_read_b64_tr_b16 v[{b0+4*dt}:{b0+1+4*dt}], v5 offset:{o + dt*32}")
                    E(f"ds_read_b64_tr_b16 v[{b0+2+4*dt}:{b0+3+4*dt}], v5 offset:{o + dt*32 + 1280}")
                for et in range(2):
                    E(f"ds_read_b64_tr_b16 v[{b0+8+4*et}:{b0+9+4*et}], v5 offset:{o + 160 + et*32}")
                    E(f"ds_read_b64_tr_b16 v[{b0+10+4*et}:{b0+11+4*et}], v5 offset:{o + 160 + et*32 + 1280}")
                E("s_waitcnt lgkmcnt(0)")
                for dt in range(2):
                    for et in range(2):
                        a = 100 + (dt * 2 + et) * 4
                        E(f"v_mfma_f32_16x16x32_bf16 v[{a}:{a+3}], v[{b0+8+4*et}:{b0+11+4*et}], v[{b0+4*dt}:{b0+3+4*dt}], v[{a}:{a+3}]")
                for dt in range(2):
                    a = 116 + dt * 4
                    E(f"v_mfma_f32_16x16x32_bf16 v[{a}:{a+3}], v[30:33], v[{b0+4*dt}:{b0+3+4*dt}], v[{a}:{a+3}]")
            srd(44, P_WS, KVA_SIZE, WS_KVA)
            E("s_lshl_b32 s4, s7, 2")
            E("s_add_u32 s4, s4, s14")
            E("s_lshl_b32 s4, s4, 12")
            E(f"v_mov_b32 v9, {hex(OOB)}")
            E("v_lshlrev_b32 v5, 9, v4")
            E("v_lshl_add_u32 v5, v3, 2, v5")
            E("v_cmp_gt_u32 vcc, 4, v3")
            E("v_cmp_eq_u32 s[58:59], 0, v4")
            nop(1)
            E("v_cndmask_b32 v6, v9, v5, vcc")
            E("v_cndmask_b32 v7, v9, v5, s[58:59]")
            E("v_cndmask_b32 v8, v9, v6, s[58:59]")
            nop(4)
            for dt in range(2):
                for et in range(2):
                    a = 100 + (dt * 2 + et) * 4
                    for r in range(4):
                        E(f"buffer_atomic_add_f32 v{a+r}, v{5+2*et+dt}, s[44:47], s4 offen offset:{(16*et+r)*128 + 64*dt}")
            for dt in range(2):
                E(f"buffer_atomic_add_f32 v{116+4*dt}, v{7+dt}, s[44:47], s4 offen offset:{20*128 + 64*dt}")
            E("s_branch g1_done")
    E("g1_done:")
    stamp(4)
    stamp_flush(5)
    E("g1_exit:")
    E("s_endpgm")
    return name, kernel_desc(name, 248)


class VQ:
    def __init__(self):
        self.q = []

    def issue(self, tag):
        self.q.append(tag)

    def wait(self, tag):
        idx = max([i for i, t in enumerate(self.q) if t == tag], default=None)
        if idx is None:
            return
        n = len(self.q) - 1 - idx
        assert n <= 63
        E(f"s_waitcnt vmcnt({n})")
        self.q = self.q[idx + 1:]


class Merger:
    def __init__(self):
        self.vq = VQ()
        self.side = []
        self.block = 0

    def emit(self, it):
        k = it[0]
        if k == "i":
            E(it[1])
        elif k == "ld":
            E(it[1])
            self.vq.issue(it[2])
        elif k == "wait":
            self.vq.wait(it[1])
        else:
            raise ValueError(k)

    def side_some(self, n):
        while n > 0 and self.side and self.block == 0:
            it = self.side.pop(0)
            if it[0] == "gap":
                self.block = it[1]
                continue
            if it[0] == "mark":
                continue
            self.emit(it)
            n -= 1

    def main(self, it, nside):
        self.emit(it)
        if self.block:
            self.block -= 1
        self.side_some(nside)

    def flush_until(self, mark):
        names = [it[1] for it in self.side if it[0] == "mark"]
        if mark not in names:
            return
        while True:
            if self.block:
                nop(self.block)
                self.block = 0
            it = self.side.pop(0)
            if it[0] == "gap":
                self.block = it[1]
                continue
            if it[0] == "mark":
                if it[1] == mark:
                    break
                continue
            self.emit(it)


T_LDS = 163840


def gen_tail():
    name = "g2_kernel"
    kernel_begin(name)
    NWG = 256
    E(f"s_cmp_ge_u32 s2, {NWG}")
    E(f"s_cbranch_scc1 {name}_exit")
    if "half" in XP:
        E("s_bitcmp1_b32 s2, 3")
        E(f"s_cbranch_scc1 {name}_exit")
    if "quarter" in XP:
        E("s_bitcmp1_b32 s2, 4")
        E(f"s_cbranch_scc1 {name}_exit")
    load_ptrs()
    E("v_lshrrev_b32 v1, 6, v0")
    E("v_and_b32 v2, 63, v0")
    E("v_readfirstlane_b32 s8, v1")
    E("v_and_b32 v3, 15, v2")
    E("v_lshrrev_b32 v4, 4, v2")
    E("v_lshlrev_b32 v1, 4, v2")
    E("s_bfe_u32 s7, s2, 0x30003")
    E("s_and_b32 s6, s2, 7")
    E("s_lshl_b32 s6, s6, 2")
    E("s_lshr_b32 s4, s2, 6")
    E("s_add_u32 s6, s6, s4")
    AV, BV, WV = 10, 14, 19
    for j in range(4):
        E(f"v_add_u32 v{AV+j}, {55296*j}, v1")
    for t in range(5):
        E(f"v_add_u32 v{BV+t}, {57344*t}, v1")
    for t in range(5):
        E(f"v_add_u32 v{WV+t}, {20480*t}, v1")
    E("s_lshl_b32 s4, s8, 10")
    E(f"s_mul_i32 s10, s6, {4*55296}")
    E("s_add_u32 s10, s10, s4")
    E(f"s_mul_i32 s11, s7, {5*57344}")
    E("s_add_u32 s11, s11, s4")
    E("s_mov_b32 s65, 4096")
    E("s_and_b32 s4, s6, 3")
    E("s_lshl_b32 s9, s7, 1")
    E("s_add_u32 s9, s9, s4")
    E("s_sub_u32 s4, s9, 14")
    E("s_cmp_ge_u32 s9, 14")
    E("s_cselect_b32 s9, s4, s9")
    if "rot" not in XP:
        E("s_mov_b32 s9, 0")
    E("s_lshl_b32 s4, s9, 12")
    E("s_add_u32 s10, s10, s4")
    E("s_add_u32 s11, s11, s4")
    E(f"s_mul_i32 s12, s7, {5*20480}")
    E("s_mul_i32 s4, s8, 5120")
    E("s_add_u32 s12, s12, s4")
    E("s_waitcnt lgkmcnt(0)")
    stamp(0)
    srd(36, P_WS, S * F * 2, WS_H)
    srd(40, P_WS, WDP_SIZE, WS_WDP)
    srd(44, P_WS, WOP_SIZE, WS_WOP)
    srd(48, P_WS, KVA_SIZE, WS_KVA)
    srd(52, P_WS, PQ_SIZE, WS_PQ)
    srd(84, P_WS, WS_END)

    T0V, T1V, ZV, PQV = 24, 25, 29, 30
    KVF, PQF0, R0, ZR, DD, OF, OF4, RSEL = 32, 44, 76, 92, 108, 124, 140, 156
    RAW = R0
    NV = 232
    ACCB, ACCS = 0, 80

    RG = 6 if "ring6" in XP else 4

    def slot(n):
        s = n % RG
        if s >= 4:
            return ("a", 36 * (s - 4))
        return ("a", 160 + 36 * s) if s < 2 else ("v", 160 + 36 * (s - 2))

    order = "DDDWDDDWDDDWDDDWDDW"
    mg = Merger()

    def loads(n):
        p, b = slot(n)
        L = []
        if order[n] == "D":
            for j in range(4):
                r = b + 4 * j
                L.append(("ld", f"buffer_load_dwordx4 {p}[{r}:{r+3}], v{AV+j}, s[36:39], s10 offen", ("m", n)))
            for t in range(5):
                r = b + 16 + 4 * t
                L.append(("ld", f"buffer_load_dwordx4 {p}[{r}:{r+3}], v{BV+t}, s[40:43], s11 offen", ("m", n)))
            L.append(("i", "\n    ".join(["s_add_u32 s9, s9, 1", "s_cmp_eq_u32 s9, 14",
                                         f"s_cselect_b32 s64, {-13*4096 & 0xffffffff}, s65",
                                         "s_cselect_b32 s9, 0, s9", "s_add_u32 s10, s10, s64",
                                         "s_add_u32 s11, s11, s64"])))
        else:
            for t in range(5):
                r = b + 16 + 4 * t
                L.append(("ld", f"buffer_load_dwordx4 {p}[{r}:{r+3}], v{WV+t}, s[44:47], s12 offen", ("m", n)))
            L.append(("i", "s_add_u32 s12, s12, 1024"))
        return L

    E(f"v_mov_b32 v9, {hex(OOB)}")
    E("v_cmp_gt_u32 vcc, 3, v4")
    E("s_mul_i32 s13, s8, 40960")
    E("s_lshl_b32 s14, s8, 15")
    E(f"v_cndmask_b32 v{PQV}, v9, v1, vcc")
    E("s_lshl_b32 s15, s6, 4")
    E("s_add_u32 s15, s15, s8")
    E(f"s_mul_i32 s15, s15, {8*768}")
    PFV = 31
    E("s_lshr_b32 s4, s2, 3")
    E("s_lshl_b32 s5, s4, 1")
    E("v_lshrrev_b32 v5, 5, v2")
    E("v_add_u32 v5, s5, v5")
    E("v_and_b32 v6, 31, v2")
    E("v_lshlrev_b32 v6, 7, v6")
    E("s_and_b32 s5, s2, 7")
    E("s_lshl_b32 s5, s5, 4")
    E("v_add_u32 v7, s5, v5")
    E("v_mul_u32_u24 v7, 55296, v7")
    E(f"v_add_u32 v7, {WS_H}, v7")
    E("v_subrev_u32 v8, 16, v5")
    E("v_mul_u32_u24 v8, 57344, v8")
    E(f"v_add_u32 v8, {WS_WDP}, v8")
    E("v_cmp_gt_u32 vcc, 16, v5")
    E("v_cmp_gt_u32 s[56:57], 56, v5")
    nop(1)
    E("v_cndmask_b32 v7, v8, v7, vcc")
    E("v_add_u32 v7, v7, v6")
    E(f"v_cndmask_b32 v{PFV}, v9, v7, s[56:57]")
    E("s_lshl_b32 s66, s8, 12")
    E("s_lshl_b32 s5, s4, 2")
    E("s_add_u32 s5, s5, s8")
    E("s_mul_i32 s4, s5, 6400")
    E(f"s_add_u32 s4, s4, {WS_WOP}")
    E("v_lshlrev_b32 v7, 7, v2")
    E("v_add_u32 v5, s4, v7")
    E("v_cmp_gt_u32 vcc, 50, v2")
    E("s_mul_i32 s5, s5, 3072")
    E("s_and_b32 s4, s2, 7")
    E(f"s_mul_i32 s4, s4, {16*32*768}")
    E("s_add_u32 s4, s4, s5")
    E(f"s_add_u32 s4, s4, {WS_PQ}")
    E("v_cndmask_b32 v5, v9, v5, vcc")
    E("v_add_u32 v6, s4, v7")
    E("v_cmp_gt_u32 vcc, 24, v2")
    nop(2)
    E("v_cndmask_b32 v6, v9, v6, vcc")

    def pf(blk):
        if "pf" not in XP:
            return []
        return [("i", f"s_add_u32 s67, s66, {blk*4096}"),
                ("ld", f"buffer_load_dword v0, v{PFV}, s[84:87], s67 offen", ("p", blk))]

    def kvdma(n):
        L = []
        for p in range(3):
            L.append(("i", f"s_add_u32 m0, s13, {n*3072 + p*1024}"))
            L.append(("i", f"s_add_u32 s4, s14, {n*4096 + p*1024}"))
            L.append(("ld", f"buffer_load_dwordx4 v1, s[48:51], s4 offen lds", ("k", n)))
        return L

    def oloads(n):
        L = []
        PQF = PQF0 + 16 * (n & 1)
        for rb in range(4):
            L.append(("i", f"s_add_u32 s5, s15, {n*768 + rb*24576}"))
            L.append(("ld", f"buffer_load_dwordx4 v[{PQF+4*rb}:{PQF+4*rb+3}], v{PQV}, s[52:55], s5 offen", ("o", n)))
        return L

    PFX = [] if "pf" not in XP else [("ld", "buffer_load_dword v0, v5, s[84:87], 0 offen", ("p", 0)),
                                   ("ld", "buffer_load_dword v0, v6, s[84:87], 0 offen", ("p", 0))]
    for it in loads(0) + kvdma(0) + oloads(0) + kvdma(1) + oloads(1) + sum([loads(k) for k in range(1, RG - 1)], []) + pf(3) + PFX:
        mg.emit(it)
    for n in range(2, 8):
        for it in (kvdma(n) if "nokv" not in XP else []):
            mg.emit(it)
    stamp(1)
    E("v_lshlrev_b32 v5, 5, v4")
    E("v_add_u32 v5, s13, v5")
    E(f"v_lshl_add_u32 v{T0V}, v3, 7, v5")
    E("v_mov_b32 v7, 23")
    for q in range(4):
        E(f"v_subrev_u32 v6, {4*q}, v3")
        E("v_cmp_gt_u32 vcc, 4, v6")
        E("v_add_u32 v6, 16, v6")
        nop(1)
        E("v_cndmask_b32 v6, v7, v6, vcc")
        E(f"v_lshl_add_u32 v{T1V+q}, v6, 7, v5")
        E(f"v_cmp_eq_u32 s[{56+2*q}:{57+2*q}], {q}, v4")
    E(f"v_add_u32 v{ZV}, {20*128}, v5")
    for r in range(160):
        E(f"v_accvgpr_write_b32 a{r}, 0")

    def I(s):
        return ("i", s)

    def r2(a, b, tmp):
        return [I(f"v_cvt_pk_bf16_f32 v{tmp}, v{a}, v{b}"), I(f"v_lshlrev_b32 v{a}, 16, v{tmp}"),
                I(f"v_and_b32 v{b}, 0xffff0000, v{tmp}")]

    side = []
    for n in range(8):
        PQF = PQF0 + 16 * (n & 1)
        side.append(("wait", ("k", n)))
        for m, a in enumerate((T0V, T1V + (n & 3), ZV)):
            for hf in range(2):
                r = RAW + 8 * m + 4 * hf
                side.append(I(f"ds_read_b128 v[{r}:{r+3}], v{a} offset:{n*3072 + 16*hf}"))
        side.append(("gap", 5))
        side.append(I("s_waitcnt lgkmcnt(0)"))
        for r in range(12):
            side.append(I(f"v_cvt_pk_bf16_f32 v{KVF+r}, v{RAW+2*r}, v{RAW+2*r+1}"))
        side.append(("wait", ("o", n)))
        side.append(I("s_nop 1"))
        for rb in range(4):
            pq = f"v[{PQF+4*rb}:{PQF+4*rb+3}]"
            side.append(I(f"v_mfma_f32_16x16x32_bf16 v[{ZR+4*rb}:{ZR+4*rb+3}], v[{KVF+8}:{KVF+11}], {pq}, 0"))
            side.append(I(f"v_mfma_f32_16x16x32_bf16 v[{R0+4*rb}:{R0+4*rb+3}], v[{KVF}:{KVF+3}], {pq}, 0"))
            c = "0" if (n & 3) == 0 else f"v[{DD+4*rb}:{DD+4*rb+3}]"
            side.append(I(f"v_mfma_f32_16x16x32_bf16 v[{DD+4*rb}:{DD+4*rb+3}], v[{KVF+4}:{KVF+7}], {pq}, {c}"))
        if n < 6:
            side += oloads(n + 2)
        side.append(("gap", 9))
        for pr in range(2):
            z0, z1 = ZR + 8 * pr, ZR + 8 * pr + 4
            side += r2(z0, z1, 6)
            side.append(I(f"v_add_f32 v{z0}, {hex(EPS6)}, v{z0}"))
            side.append(I(f"v_add_f32 v{z1}, {hex(EPS6)}, v{z1}"))
            side += r2(z0, z1, 6)
            side.append(I(f"v_rcp_f32 v{z0}, v{z0}"))
            side.append(I(f"v_rcp_f32 v{z1}, v{z1}"))
        for rb in range(4):
            z = ZR + 4 * rb
            for p in range(2):
                a = R0 + 4 * rb + 2 * p
                side += r2(a, a + 1, 6 + p)
                side.append(I(f"v_pk_mul_f32 v[{a}:{a+1}], v[{a}:{a+1}], v[{z}:{z+1}] op_sel:[0,0] op_sel_hi:[1,0]"))
                side.append(I(f"v_cvt_pk_bf16_f32 v{OF + 4*rb + 2*(n&1) + p}, v{a}, v{a+1}"))
            q = n & 3
            if q == 0:
                side.append(I(f"v_mov_b32 v{RSEL+rb}, v{z}"))
            else:
                side.append(I(f"v_cndmask_b32 v{RSEL+rb}, v{RSEL+rb}, v{z}, s[{56+2*q}:{57+2*q}]"))
        if (n & 3) == 3:
            for rb in range(4):
                for p in range(2):
                    a = DD + 4 * rb + 2 * p
                    side += r2(a, a + 1, 6 + p)
                    side.append(I(f"v_mul_f32 v{a}, v{a}, v{RSEL+rb}"))
                    side.append(I(f"v_mul_f32 v{a+1}, v{a+1}, v{RSEL+rb}"))
                    side.append(I(f"v_cvt_pk_bf16_f32 v{OF4 + 4*rb + 2*(n>>2) + p}, v{a}, v{a+1}"))
        if n & 1:
            side.append(("mark", n >> 1))
    if "tnoside" in XP:
        side = []
    mg.side = side

    NST = len(order)
    wi = 0
    for n in range(NST):
        p, b = slot(n)
        if order[n] == "W":
            mg.flush_until(min(wi, 3))
            nop(2)
        mg.emit(("wait", ("m", n)))
        if n == 0:
            stamp(2)
        L = loads(n + RG - 1) if n + RG - 1 < NST else []
        if n == 1:
            L += pf(7)
        if n == 5:
            L += pf(11)
        M = []
        for t in range(5):
            for j in range(4):
                w = f"{p}[{b+16+4*t}:{b+19+4*t}]"
                if order[n] == "D":
                    a = ACCB + (j * 5 + t) * 4
                    x = f"{p}[{b+4*j}:{b+4*j+3}]"
                else:
                    a = ACCS + (j * 5 + t) * 4
                    xo = (OF if wi < 4 else OF4) + 4 * j
                    x = f"v[{xo}:{xo+3}]"
                M.append(I(f"v_mfma_f32_16x16x32_bf16 a[{a}:{a+3}], {w}, {x}, a[{a}:{a+3}]"))
        ns = 0 if order[n] == "W" else 3
        if "tnomfma" in XP:
            M = [I("s_nop 0") for _ in M]
        for k, m in enumerate(M):
            mg.main(m, ns)
            if k % 2 == 1 and L:
                mg.main(L.pop(0), 0)
        while L:
            mg.main(L.pop(0), 0)
        if order[n] == "W":
            wi += 1
    assert not [it for it in mg.side if it[0] in ("i", "ld")]
    nop(10)
    stamp(3)
    srd(44, P_X, S * D * 2)
    srd(48, P_OUT, S * D * 2)
    E("s_lshl_b32 s4, s6, 6")
    E("s_lshl_b32 s5, s8, 4")
    E("s_add_u32 s4, s4, s5")
    E("v_add_u32 v7, s4, v3")
    E("v_mul_u32_u24 v7, 1280, v7")
    E("v_lshl_add_u32 v7, v4, 3, v7")
    E("s_mul_i32 s4, s7, 160")
    E("v_add_u32 v7, s4, v7")
    for t in range(5):
        E(f"buffer_load_dwordx2 v[{10+2*t}:{11+2*t}], v7, s[44:47], 0 offen offset:{32*t}")
    E("s_mul_i32 s4, s8, 40960")
    E("v_add_u32 v6, s4, v1")
    for w in range(4):
        lab = f"{name}_w{w}"
        E(f"s_cmp_eq_u32 s8, {w}")
        E(f"s_cbranch_scc1 {lab}")
        for gm in range(2):
            for t in range(5):
                a = (ACCB, ACCS)[gm] + (w * 5 + t) * 4
                E(f"ds_write_b128 v6, a[{a}:{a+3}] offset:{(gm*20 + w*5 + t)*1024}")
        E(f"{lab}:")
    for w in range(4):
        lab = f"{name}_o{w}"
        E(f"s_cmp_lg_u32 s8, {w}")
        E(f"s_cbranch_scc1 {lab}")
        for gm in range(2):
            for r in range(20):
                E(f"v_accvgpr_read_b32 v{30+20*gm+r}, a{(ACCB, ACCS)[gm] + w*20 + r}")
        E(f"{lab}:")
    E("s_waitcnt lgkmcnt(0)")
    E("s_barrier")
    E("s_mul_i32 s5, s8, 5120")
    for d in range(1, 4):
        E(f"s_add_u32 s4, s8, {d}")
        E("s_and_b32 s4, s4, 3")
        E("s_mul_i32 s4, s4, 40960")
        E("s_add_u32 s4, s4, s5")
        E(f"v_add_u32 v{20+d}, s4, v1")
    for d in range(1, 4):
        for gm in range(2):
            for t in range(5):
                r = 70 + ((d - 1) * 10 + gm * 5 + t) * 4
                E(f"ds_read_b128 v[{r}:{r+3}], v{20+d} offset:{(gm*20 + t)*1024}")
    E(f"s_mov_b32 s50, {hex(LOG2E ^ 0x80000000)}")
    E("s_waitcnt lgkmcnt(0) vmcnt(0)")
    for r in range(40):
        E(f"v_add_f32 v{70+r}, v{70+r}, v{110+r}")
        E(f"v_add_f32 v{30+r}, v{30+r}, v{150+r}")
    for r in range(40):
        E(f"v_add_f32 v{30+r}, v{30+r}, v{70+r}")
    for t in range(5):
        bb = 30 + 4 * t
        ss = 50 + 4 * t
        for p in range(2):
            x, y = bb + 2 * p, bb + 2 * p + 1
            a, b = ss + 2 * p, ss + 2 * p + 1
            bf16r2(x, y, 6)
            for r, tt in ((x, 8), (y, 9)):
                E(f"v_mul_f32 v{tt}, s50, v{r}")
                E(f"v_exp_f32 v{tt}, v{tt}")
            bf16r2(a, b, 6)
            for r, tt in ((x, 8), (y, 9)):
                E(f"v_add_f32 v{tt}, 1.0, v{tt}")
                E(f"v_rcp_f32 v{tt}, v{tt}")
            nop(1)
            E(f"v_mul_f32 v{x}, v{x}, v8")
            E(f"v_mul_f32 v{y}, v{y}, v9")
            bf16r2(x, y, 6)
            E(f"v_mul_f32 v{a}, v{a}, v{x}")
            E(f"v_mul_f32 v{b}, v{b}, v{y}")
            bf16r2(a, b, 6)
            xq = 10 + 2 * t + p
            E(f"v_lshlrev_b32 v8, 16, v{xq}")
            E(f"v_and_b32 v9, 0xffff0000, v{xq}")
            E(f"v_add_f32 v{a}, v{a}, v8")
            E(f"v_add_f32 v{b}, v{b}, v9")
            E(f"v_cvt_pk_bf16_f32 v{24+p}, v{a}, v{b}")
        E(f"buffer_store_dwordx2 v[24:25], v7, s[48:51], 0 offen offset:{32*t}")
        nop(1)
    stamp(4)
    stamp_flush(5)
    E(f"{name}_exit:")
    E("s_endpgm")
    return name, kernel_desc(name, NV, 232)


def main():
    hdr = open("cdna_kernels/%s.s.ref" % NAME).read().split("\n")
    top = [l for l in hdr if l.startswith(";") and "@launch" not in l]
    launches = [
        ("k0_kernel", K0_N, 256, 0),
        ("g1_kernel", 240, 512, RING1 * STG1),
        ("g2_kernel", 256, 256, T_LDS),
    ]
    if "twice" in XP:
        launches.append(launches[-1])
    top += [f"; @launch kernel={k} grid=({g},1,1) block=({b},1,1) lds={l}" for k, g, b, l in launches]
    E('.amdgcn_target "amdgcn-amd-amdhsa--gfx950"')
    E(".text")
    descs = []
    descs.append(gen_k0())
    descs.append(gen_g1())
    descs.append(gen_tail())
    E('.section .rodata,"a"')
    body = "\n".join(top) + "\n" + "\n".join(out) + "\n" + "".join(d for _, d in descs)
    open(os.environ.get("OUT", "cdna_kernels/%s.s" % NAME), "w").write(body)


if __name__ == "__main__":
    main()
```

```python
import os

NAME = "recurrent_scan__linear_attn_block__glu_gated_glu__prompt"
S, D, H, DH, F = 2048, 640, 32, 20, 1728

WS_XN = 0
WS_PQ = WS_XN + S * D * 2
PQ_SIZE = 128 * 32 * 768
WS_H = WS_PQ + PQ_SIZE
WS_KVA = WS_H + S * F * 2
KVA_SIZE = 32 * 4096
WS_WDP = WS_KVA + KVA_SIZE
WDP_SIZE = 40 * 57344
WS_WOP = WS_WDP + WDP_SIZE
WOP_SIZE = 40 * 20480
WS_END = WS_WOP + WOP_SIZE

LOG2E = 0x3fb8aa3b
EPS6 = 0x358637bd
EPS5 = 0x3727c5ac
OOB = 0x7ff00000

out = []
STAMP = os.environ.get("STAMP") is not None
XP = os.environ.get("XP", "").split(",")


POL = os.environ.get("POL", "sc1")
POL2 = os.environ.get("POL2", "")


PKPOL = "" if "pknosc" in XP else " sc1"


def E(s=""):
    if s.startswith("buffer_store_dwordx4") and POL and "sc1" not in s:
        s += " " + POL
    elif s.startswith("buffer_store") and POL2 and "s[80:83]" not in s:
        s += " " + POL2
    out.append("    " + s if s and not s.endswith(":") else s)


def nop(n):
    while n > 0:
        k = min(n, 16)
        E(f"s_nop {k-1}")
        n -= k


def load_ptrs():
    E("s_load_dwordx16 s[16:31], s[0:1], 0")
    E("s_load_dwordx4 s[32:35], s[0:1], 64")


def srd(d, base, nbytes, off=0):
    if off:
        E(f"s_add_u32 s{d}, s{base}, {off}")
        E(f"s_addc_u32 s{d+1}, s{base+1}, 0")
    else:
        E(f"s_mov_b32 s{d}, s{base}")
        E(f"s_mov_b32 s{d+1}, s{base+1}")
    E(f"s_and_b32 s{d+1}, s{d+1}, 0xffff")
    E(f"s_mov_b32 s{d+2}, {nbytes}")
    E(f"s_mov_b32 s{d+3}, 0x00020000")


P_X, P_WQKV, P_WO, P_WG, P_WU, P_WD, P_OUT, P_WS = 16, 18, 20, 24, 26, 28, 30, 34


def bf16r2(a, b, tmp):
    E(f"v_cvt_pk_bf16_f32 v{tmp}, v{a}, v{b}")
    E(f"v_lshlrev_b32 v{a}, 16, v{tmp}")
    E(f"v_and_b32 v{b}, 0xffff0000, v{tmp}")


def stamp(i):
    if not STAMP:
        return
    E("s_memtime s[68:69]")
    E("s_waitcnt lgkmcnt(0)")
    E(f"s_mov_b32 s{70+i}, s68")


def stamp_rt(i):
    if not STAMP:
        return
    E("s_memrealtime s[68:69]")
    E("s_waitcnt lgkmcnt(0)")
    E(f"s_mov_b32 s{70+i}, s68")


def stamp_flush_k0(n, div):
    if not STAMP:
        return
    lab = f"stamp_skip{len(out)}"
    E("s_cmp_lg_u32 s8, 0")
    E(f"s_cbranch_scc1 {lab}")
    E(f"s_mul_i32 s64, s2, {(65536 + div - 1) // div}")
    E("s_lshr_b32 s64, s64, 16")
    E(f"s_mul_i32 s65, s64, {div}")
    E("s_cmp_lg_u32 s65, s2")
    E(f"s_cbranch_scc1 {lab}")
    E("s_lshl_b32 s64, s64, 5")
    srd(80, 32, 256)
    for i in range(n):
        E(f"v_mov_b32 v1, s{70+i}")
        E(f"v_mov_b32 v0, {4*i}")
        E("buffer_store_dword v1, v0, s[80:83], s64 offen")
    E(f"{lab}:")


def stamp_flush(n, wave_sreg=8, wsel=0):
    if not STAMP:
        return
    lab = f"stamp_skip{len(out)}"
    E(f"s_cmp_lg_u32 s{wave_sreg}, {wsel}")
    E(f"s_cbranch_scc1 {lab}")
    E("s_and_b32 s64, s2, 31")
    E("s_lshr_b32 s65, s2, 5")
    E("s_cmp_lg_u32 s64, s65")
    E(f"s_cbranch_scc1 {lab}")
    E("s_lshl_b32 s64, s64, 5")
    srd(80, 32, 256)
    for i in range(n):
        E(f"v_mov_b32 v1, s{70+i}")
        E(f"v_mov_b32 v0, {4*i}")
        E("buffer_store_dword v1, v0, s[80:83], s64 offen")
    E(f"{lab}:")


RTALL = "rtall" in XP


def kernel_begin(name):
    E(f".globl {name}")
    E(".p2align 8")
    E(f".type {name},@function")
    E(f"{name}:")
    if RTALL:
        E("s_memrealtime s[90:91]")


def rt_end(kidx):
    if not RTALL:
        return
    lab = f"rt_skip{len(out)}"
    E("s_waitcnt vmcnt(0) lgkmcnt(0)")
    E("s_memrealtime s[92:93]")
    E("s_cmp_lg_u32 s8, 0")
    E(f"s_cbranch_scc1 {lab}")
    srd(80, P_WS, 65536, WS_END)
    E("s_lshl_b32 s64, s2, 3")
    E(f"s_add_u32 s64, s64, {kidx*16384}")
    E("s_waitcnt lgkmcnt(0)")
    E("v_mov_b32 v0, s90")
    E("v_mov_b32 v1, s92")
    E("v_mov_b32 v2, 0")
    E("buffer_store_dwordx2 v[0:1], v2, s[80:83], s64 offen")
    E(f"{lab}:")


def kernel_desc(name, nvgpr, nagpr=0, nsgpr=100):
    acc = (nvgpr + 3) // 4 * 4
    nfv = acc + nagpr if nagpr else nvgpr
    return f""".p2align 6
.amdhsa_kernel {name}
  .amdhsa_next_free_vgpr {nfv}
  .amdhsa_next_free_sgpr {nsgpr}
  .amdhsa_accum_offset {acc}
  .amdhsa_group_segment_fixed_size 0
  .amdhsa_kernarg_size 80
  .amdhsa_user_sgpr_count 2
  .amdhsa_user_sgpr_kernarg_segment_ptr 1
  .amdhsa_system_sgpr_workgroup_id_x 1
.end_amdhsa_kernel
"""


def wave_sum(v, t):
    for off in (0x041F, 0x081F, 0x101F, 0x201F, 0x401F):
        E(f"ds_swizzle_b32 v{t}, v{v} offset:{off}")
        E("s_waitcnt lgkmcnt(0)")
        E(f"v_add_f32 v{v}, v{v}, v{t}")
    nop(1)
    E(f"v_readlane_b32 s4, v{v}, 32")
    E(f"v_readlane_b32 s5, v{v}, 0")
    nop(2)
    E(f"v_mov_b32 v{v}, s4")
    E(f"v_add_f32 v{v}, s5, v{v}")


K0_W1 = 512
U_N = 1210
K0_N = K0_W1 + (U_N + 3) // 4 if "nopf" not in XP else K0_W1
K0_LDSW = 9216


def gen_k0():
    name = "k0_kernel"
    kernel_begin(name)
    E(f"s_cmp_ge_u32 s2, {K0_N}")
    E("s_cbranch_scc1 k0_exit")
    stamp_rt(0)
    load_ptrs()
    E("v_lshrrev_b32 v1, 6, v0")
    E("v_and_b32 v2, 63, v0")
    E("v_readfirstlane_b32 s8, v1")
    E(f"s_cmp_ge_u32 s2, {K0_W1}")
    E("s_cbranch_scc1 k0_pack")
    E("v_lshl_add_u32 v1, s2, 2, v1")
    E("v_mul_u32_u24 v1, 1280, v1")
    E("v_lshl_add_u32 v1, v2, 2, v1")
    E("s_waitcnt lgkmcnt(0)")
    srd(36, P_X, S * D * 2)
    srd(40, P_WS, S * D * 2, WS_XN)
    for j in range(5):
        E(f"buffer_load_dword v{10+j}, v1, s[36:39], 0 offen offset:{256*j}")
    E("v_lshrrev_b32 v30, 4, v2")
    E("v_lshlrev_b32 v30, 10, v30")
    E("v_bfe_u32 v31, v2, 2, 2")
    E("v_lshl_add_u32 v30, v31, 8, v30")
    E("v_and_b32 v31, 3, v2")
    E("v_lshl_add_u32 v30, v31, 2, v30")
    E("s_lshr_b32 s4, s2, 2")
    E("s_mul_i32 s4, s4, 20480")
    E("s_and_b32 s5, s2, 3")
    E("s_lshl_b32 s5, s5, 2")
    E("s_add_u32 s5, s5, s8")
    E("s_lshl_b32 s5, s5, 4")
    E("s_add_u32 s4, s4, s5")
    E("v_add_u32 v30, s4, v30")
    E("s_cmp_ge_u32 s2, 128")
    E("s_cbranch_scc1 ln_nz")
    srd(44, P_WS, KVA_SIZE, WS_KVA)
    E("v_lshlrev_b32 v32, 2, v0")
    E("v_mov_b32 v31, 0")
    E("s_lshl_b32 s4, s2, 10")
    E("buffer_store_dword v31, v32, s[44:47], s4 offen")
    E("ln_nz:")
    stamp_rt(1)
    E("s_waitcnt vmcnt(0)")
    stamp_rt(2)
    for j in range(5):
        E(f"v_lshlrev_b32 v{20+2*j}, 16, v{10+j}")
        E(f"v_and_b32 v{21+2*j}, 0xffff0000, v{10+j}")
    E("v_add_f32 v3, v20, v21")
    for j in range(2, 10):
        E(f"v_add_f32 v3, v3, v{20+j}")
    wave_sum(3, 4)
    E("v_mul_f32 v3, 0x3acccccd, v3")
    E("v_mov_b32 v5, 0")
    for j in range(10):
        E(f"v_sub_f32 v6, v{20+j}, v3")
        E("v_fmac_f32 v5, v6, v6")
    wave_sum(5, 6)
    E("v_mul_f32 v5, 0x3acccccd, v5")
    bf16r2(3, 5, 7)
    E(f"v_add_f32 v5, {hex(EPS5)}, v5")
    E("v_mov_b32 v6, 0")
    bf16r2(5, 6, 7)
    E("v_sqrt_f32 v5, v5")
    nop(1)
    bf16r2(5, 6, 7)
    E("v_rcp_f32 v8, v5")
    nop(1)
    for j in range(0, 10, 2):
        a, b = 20 + j, 21 + j
        E(f"v_sub_f32 v{a}, v{a}, v3")
        E(f"v_sub_f32 v{b}, v{b}, v3")
        bf16r2(a, b, 7)
        for r in (a, b):
            E(f"v_mul_f32 v9, v{r}, v8")
            E(f"v_fma_f32 v6, -v9, v5, v{r}")
            E(f"v_fma_f32 v{r}, v6, v8, v9")
        E(f"v_cvt_pk_bf16_f32 v{10+j//2}, v{a}, v{b}")
    for j in range(5):
        E(f"s_mov_b32 s4, {4096*j}")
        E(f"buffer_store_dword v{10+j}, v30, s[40:43], s4 offen")
    E("s_branch k0_done")

    E("k0_pack:")
    E(f"s_sub_u32 s4, s2, {K0_W1}")
    E("s_lshl_b32 s4, s4, 2")
    E("s_add_u32 s4, s4, s8")
    E("v_lshlrev_b32 v1, 4, v2")
    E("s_waitcnt lgkmcnt(0)")
    lo = 0
    mats = [(P_WQKV, D * 3 * D * 2), (P_WG, D * F * 2), (P_WU, D * F * 2), (P_WD, F * D * 2), (P_WO, D * D * 2)]
    for mi, (p, nb) in enumerate(mats):
        nu = nb // 8192
        assert nu * 8192 == nb
        if mi < len(mats) - 1:
            E(f"s_cmp_ge_u32 s4, {lo + nu}")
            E(f"s_cbranch_scc1 k0_pf{mi+1}")
        srd(36, p, nb)
        E(f"s_sub_u32 s4, s4, {lo}")
        if mi < len(mats) - 1:
            E("s_branch k0_pfgo")
            E(f"k0_pf{mi+1}:")
        lo += nu
    assert lo == U_N, lo
    E("k0_pfgo:")
    E("s_lshl_b32 s4, s4, 13")
    E("s_add_u32 s5, s4, 4096")
    for q in range(8):
        E(f"buffer_load_dwordx4 v[{20+4*q}:{23+4*q}], v1, s[36:39], s{4 + q//4} offen offset:{1024*(q&3)}")
    if "pfwait" in XP:
        E("s_waitcnt vmcnt(0)")
    E("k0_done:")
    stamp_rt(3)
    if STAMP:
        E("s_waitcnt vmcnt(0)")
    stamp_rt(4)
    stamp_flush_k0(5, 106)
    rt_end(0)
    E("k0_exit:")
    E("s_endpgm")
    return name, kernel_desc(name, 80)


STG1 = 28672
RING1 = 5


def interleave(main, fill, start=0, every=1):
    fi = 0
    for n, m in enumerate(main):
        E(m)
        if n >= start and (n - start) % every == 0 and fi < len(fill):
            E(fill[fi])
            fi += 1
    while fi < len(fill):
        E(fill[fi])
        fi += 1


KP = 352
KVC = [[0, 16, 32, 96, 112], [48, 64, 128, 144, 160]]


def gen_g1():
    name = "g1_kernel"
    kernel_begin(name)
    NWG = 256
    E(f"s_cmp_ge_u32 s2, {NWG}")
    E("s_cbranch_scc1 g1_exit")
    load_ptrs()
    E("s_and_b32 s6, s2, 7")
    E("s_mul_i32 s6, s6, 30")
    E("s_lshr_b32 s7, s2, 3")
    E("s_add_u32 s7, s7, s6")
    E("s_and_b32 s6, s7, 7")
    E("s_lshr_b32 s7, s7, 3")
    E("v_lshrrev_b32 v1, 6, v0")
    E("v_and_b32 v2, 63, v0")
    E("v_readfirstlane_b32 s8, v1")
    E("v_and_b32 v3, 15, v2")
    E("v_lshrrev_b32 v4, 4, v2")
    E("v_lshlrev_b32 v1, 4, v2")
    E("s_lshr_b32 s11, s8, 1")
    E("s_lshr_b32 s12, s8, 2")
    E("s_xor_b32 s12, s12, s8")
    E("s_and_b32 s12, s12, 1")
    E("s_lshl_b32 s13, s11, 6")
    E("s_mov_b32 s60, 0")
    E("s_mov_b32 s61, 0")
    E("s_mov_b32 s47, 1024")
    E("s_mov_b32 s94, 0")
    E("s_waitcnt lgkmcnt(0)")
    stamp(0)
    E("s_cmp_ge_u32 s2, 240")
    E("s_cbranch_scc1 g1_pack")
    E("s_cmp_lt_u32 s7, 8")
    E("s_cbranch_scc1 g1_qkv")
    E("s_branch g1_gu")

    for typ in ("qkv", "gu"):
        E(f"g1_{typ}:")
        gu = typ == "gu"
        NT = 6 if gu else 5
        ACC = 100
        XF = [30, 46]
        WF = [200, 224]

        for role in ("a", "b"):
            P = 4 if role == "a" else 3
            if role == "a":
                E("s_cmp_lt_u32 s8, 4")
                E(f"s_cbranch_scc0 g1_{typ}_b")
                srd(36, P_WS, S * D * 2, WS_XN)
                E(f"s_mul_i32 s9, s8, {4*20480}")
                E("v_add_u32 v10, s9, v1")
                for i in range(1, 4):
                    E(f"v_add_u32 v{10+i}, {20480*i}, v10")
                E("s_mul_i32 s10, s6, 327680")
                E("s_lshl_b32 s44, s8, 12")
            else:
                E(f"g1_{typ}_b:")
                E("s_sub_u32 s14, s8, 4")
                E("s_mul_i32 s14, s14, 3")
                E("s_mov_b32 s9, 12")
                E("s_mov_b32 s46, 0")
                if gu:
                    E("s_cmp_lt_u32 s7, 12")
                    E("s_cbranch_scc0 g1_b_gu")
                    srd(36, P_WQKV, D * 3 * D * 2)
                    E("s_mov_b32 s45, 3840")
                    E("s_sub_u32 s15, s7, 8")
                    E("s_mul_i32 s15, s15, 320")
                    E("s_mov_b32 s9, 10")
                    E("s_branch g1_b_j")
                    E("g1_b_gu:")
                    E("s_mov_b32 s45, 3456")
                    E("s_sub_u32 s15, s7, 12")
                    E("s_mul_i32 s15, s15, 192")
                    E("s_cmp_lt_u32 s8, 6")
                    E("s_cbranch_scc0 g1_b_up")
                    srd(36, P_WG, D * F * 2)
                    E("s_branch g1_b_j")
                    E("g1_b_up:")
                    srd(36, P_WU, D * F * 2)
                    E("s_mov_b32 s46, 192")
                    E("g1_b_j:")
                else:
                    srd(36, P_WQKV, D * 3 * D * 2)
                    E("s_mov_b32 s45, 3840")
                    E("s_mul_i32 s15, s7, 160")
                    E("s_and_b32 s4, s7, 1")
                    E("s_lshl_b32 s4, s4, 5")
                    E("s_sub_u32 s15, s15, s4")
                    E("s_add_u32 s15, s15, 1280")
                    E(f"s_add_u32 s4, s15, {1280-192}")
                    E("s_cmp_lt_u32 s8, 6")
                    E("s_cselect_b32 s15, s15, s4")
                E("s_sub_u32 s15, s15, s46")
                E("s_lshl_b32 s47, s45, 5")
                E("v_lshrrev_b32 v5, 2, v2")
                E("v_mul_lo_u32 v5, v5, s45")
                E("v_lshrrev_b32 v6, 4, v2")
                E("v_and_b32 v6, 2, v6")
                E("v_and_b32 v7, 3, v2")
                E("v_xor_b32 v6, v6, v7")
                E("v_lshl_add_u32 v5, v6, 4, v5")
                E("s_lshl_b32 s46, s45, 4")
                for i in range(3):
                    E(f"s_add_u32 s4, s14, {i}")
                    E("s_lshr_b32 s5, s4, 1")
                    E("s_lshl_b32 s5, s5, 6")
                    E("s_add_u32 s5, s5, s15")
                    E("s_bitcmp1_b32 s4, 0")
                    E("s_cselect_b32 s10, s46, 0")
                    E("s_add_u32 s5, s5, s10")
                    E("s_cmp_lt_u32 s4, s9")
                    E(f"s_cselect_b32 s5, s5, {hex(OOB)}")
                    E(f"v_add_u32 v{10+i}, s5, v5")
                E("s_mov_b32 s10, 0")
                E("s_lshl_b32 s44, s14, 10")
                E("s_add_u32 s44, s44, 16384")

            def dma():
                E("s_add_u32 s4, s44, s61")
                for i in range(P):
                    if i:
                        E("s_add_u32 s4, s4, 1024")
                    E("s_mov_b32 m0, s4")
                    nop(1)
                    E(f"buffer_load_dwordx4 v{10+i}, s[36:39], s10 offen lds")
                E("s_add_u32 s10, s10, s47")
                E(f"s_add_u32 s61, s61, {STG1}")
                E(f"s_cmp_eq_u32 s61, {RING1*STG1}")
                E("s_cselect_b32 s61, 0, s61")

            for st in range(RING1 - 1):
                dma()
            stamp(1)
            E("s_lshl_b32 s4, s11, 12")
            E("v_add_u32 v20, s4, v1")
            BA, BT = 62, 68
            E("v_and_b32 v5, 3, v3")
            if gu:
                E("s_cmp_lt_u32 s7, 12")
                E(f"s_cbranch_scc1 g1_c{role}_q")
                E("v_and_b32 v6, 1, v5")
                E("v_lshlrev_b32 v6, 3, v6")
                E("v_lshrrev_b32 v7, 1, v5")
                E("v_lshl_add_u32 v6, v7, 2, v6")
                E("s_mul_i32 s4, s12, 48")
                E("v_add_u32 v6, s4, v6")
                for t in range(6):
                    E(f"v_add_u32 v{BA+t}, {16*t if t < 3 else 96+16*(t-3)}, v6")
                E(f"s_branch g1_c{role}_j")
                E(f"g1_c{role}_q:")
                E("s_mul_i32 s4, s12, 80")
                for t in range(3):
                    E(f"v_add_u32 v8, {4*t}, v5")
                    E("v_mul_u32_u24 v9, 86, v8")
                    E("v_lshrrev_b32 v9, 8, v9")
                    E("v_mul_u32_u24 v6, 3, v9")
                    E("v_sub_u32 v8, v8, v6")
                    E("v_mul_u32_u24 v9, 20, v9")
                    E("v_lshl_add_u32 v9, v8, 3, v9")
                    E(f"v_add_u32 v{BA+t}, s4, v9")
                    E("v_cmp_gt_u32 vcc, 2, v8")
                    nop(2)
                    E("v_cndmask_b32 v9, 0, 4, vcc")
                    E(f"v_add_u32 v{BA+3+t}, v{BA+t}, v9")
                E(f"g1_c{role}_j:")
            else:
                E("s_and_b32 s4, s7, 1")
                E("s_lshl_b32 s4, s4, 4")
                E("v_lshl_add_u32 v6, v5, 2, s4")
                E("s_mul_i32 s5, s12, 48")
                E("v_add_u32 v6, s5, v6")
                for t in range(5):
                    assert KVC[1][t] - KVC[0][t] == (96 if t == 2 else 48)
                    E(f"v_add_u32 v{BA+t}, {KVC[0][t]}, v6")
                E(f"v_add_u32 v{BA+2}, s5, v{BA+2}")
            E("v_lshlrev_b32 v5, 9, v4")
            E("v_lshrrev_b32 v6, 2, v3")
            E("v_lshl_add_u32 v5, v6, 6, v5")
            E("v_add_u32 v5, 16384, v5")
            for t in range(NT):
                c = BA + t
                E(f"v_lshrrev_b32 v6, 5, v{c}")
                E("v_lshl_add_u32 v6, v6, 11, v5")
                E(f"v_lshrrev_b32 v7, 4, v{c}")
                E("v_xor_b32 v7, v7, v4")
                E("v_and_b32 v7, 1, v7")
                E("v_lshl_add_u32 v6, v7, 5, v6")
                E(f"v_bfe_u32 v7, v{c}, 2, 2")
                E(f"v_lshl_add_u32 v{c}, v7, 3, v6")
            for r in range(NT * 16):
                E(f"v_mov_b32 v{ACC+r}, 0")

            def reads(kk):
                L = []
                for j in range(4):
                    r = XF[kk] + 4 * j
                    pre = "v_add_u32 v24, s60, v20\n    " if j == 0 else ""
                    L.append(pre + f"ds_read_b128 v[{r}:{r+3}], v24 offset:{1024*j}")
                for t in range(NT):
                    r = WF[kk] + 4 * t
                    L.append(f"v_add_u32 v{BT+t}, s60, v{BA+t}\n    ds_read_b64_tr_b16 v[{r}:{r+1}], v{BT+t}")
                    L.append(f"ds_read_b64_tr_b16 v[{r+2}:{r+3}], v{BT+t} offset:256")
                L.append(f"s_add_u32 s60, s60, {STG1}\n    s_cmp_eq_u32 s60, {RING1*STG1}\n    s_cselect_b32 s60, 0, s60")
                return L

            def mfmas(kk):
                L = []
                for t in range(NT):
                    for j in range(4):
                        a = ACC + (t * 4 + j) * 4
                        w = WF[kk] + 4 * t
                        x = XF[kk] + 4 * j
                        L.append(f"v_mfma_f32_16x16x32_bf16 v[{a}:{a+3}], v[{w}:{w+3}], v[{x}:{x+3}], v[{a}:{a+3}]")
                return L

            NS = 20
            early = role == "a"
            E(f"s_waitcnt vmcnt({P*(RING1-3)})")
            E("s_barrier")
            stamp(2)
            for l in reads(0):
                E(l)
            E("s_waitcnt lgkmcnt(0)")

            def stage(kk, do_dma, do_reads, nwait):
                if early and do_dma:
                    dma()
                interleave(mfmas(kk), reads(kk ^ 1) if do_reads else [])
                if (not early) and do_dma:
                    dma()
                if nwait is not None:
                    E(f"s_waitcnt vmcnt({P*nwait}) lgkmcnt(0)")
                    E("s_barrier")

            M = 16
            E(f"s_mov_b32 s62, {M//2}")
            E(f"g1_{typ}_{role}_loop:")
            for u in range(2):
                stage(u, True, True, RING1 - 3)
            E("s_sub_u32 s62, s62, 1")
            E("s_cmp_lg_u32 s62, 0")
            E(f"s_cbranch_scc1 g1_{typ}_{role}_loop")
            for s in range(M, NS):
                rem = NS - (s + 3)
                stage(s & 1, False, s + 1 < NS, max(rem, 0) if s + 2 < NS else None)
                if s + 2 >= NS and s + 1 < NS:
                    E("s_waitcnt lgkmcnt(0)")
            if role == "a":
                E(f"s_branch g1_{typ}_epi")
        E(f"g1_{typ}_epi:")
        nop(10)
        stamp(3)
        E(f"s_mov_b32 s50, {hex(LOG2E ^ 0x80000000)}")
        E(f"s_mov_b32 s51, {hex(LOG2E ^ 0x80000000)}")
        E("s_mov_b32 s52, 1.0")
        E("s_mov_b32 s53, 1.0")
        E(f"s_mov_b32 s54, {hex(LOG2E)}")
        E(f"s_mov_b32 s55, {hex(LOG2E)}")
        E(f"s_mov_b32 s56, {hex(EPS6)}")
        E(f"s_mov_b32 s57, {hex(EPS6)}")

        def phi4(a, o=8):
            for p in range(2):
                x, y = a + 2 * p, a + 2 * p + 1
                bf16r2(x, y, 6)
                E(f"v_pk_mul_f32 v[26:27], v[{x}:{y}], s[54:55]")
                E("v_exp_f32 v26, v26 clamp")
                E("v_exp_f32 v27, v27 clamp")
                E(f"v_max_f32 v24, 0, v{x}")
                E(f"v_max_f32 v25, 0, v{y}")
                E("v_pk_add_f32 v[24:25], v[24:25], v[26:27]")
                bf16r2(24, 25, 6)
                E("v_pk_add_f32 v[24:25], v[24:25], s[56:57]")
                E(f"v_cvt_pk_bf16_f32 v{o+p}, v24, v25")

        def plain4(a, o=8):
            E(f"v_cvt_pk_bf16_f32 v{o}, v{a}, v{a+1}")
            E(f"v_cvt_pk_bf16_f32 v{o+1}, v{a+2}, v{a+3}")

        if gu:
            E("s_cmp_lt_u32 s7, 12")
            E("s_cbranch_scc1 g1_q")
            srd(44, P_WS, S * F * 2, WS_H)
            E("v_lshrrev_b32 v6, 1, v4")
            E("v_mul_u32_u24 v5, 55296, v6")
            E("v_lshl_add_u32 v5, v3, 4, v5")
            E("v_and_b32 v6, 1, v4")
            E("v_lshl_add_u32 v5, v6, 8, v5")
            E("s_lshl_b32 s4, s6, 2")
            E("s_add_u32 s4, s4, s11")
            E(f"s_mul_i32 s4, s4, {4*55296}")
            E("s_sub_u32 s15, s7, 12")
            E("s_mul_i32 s15, s15, 6")
            E("s_mul_i32 s5, s12, 3")
            E("s_add_u32 s15, s15, s5")
            E("s_lshl_b32 s15, s15, 9")
            E("s_add_u32 s4, s4, s15")
            n = 0
            for jp in range(2):
                for t in range(3):
                    o = 8 + 4 * (n & 1)
                    n += 1
                    for jj in range(2):
                        j = 2 * jp + jj
                        ga = ACC + (t * 4 + j) * 4
                        ua = ACC + ((t + 3) * 4 + j) * 4
                        for p in range(2):
                            a, b = ga + 2 * p, ga + 2 * p + 1
                            c, d = ua + 2 * p, ua + 2 * p + 1
                            bf16r2(a, b, 6)
                            E(f"v_pk_mul_f32 v[{a}:{b}], v[{a}:{b}], s[50:51]")
                            E(f"v_exp_f32 v{a}, v{a}")
                            E(f"v_exp_f32 v{b}, v{b}")
                            bf16r2(c, d, 7)
                            E(f"v_pk_add_f32 v[{a}:{b}], v[{a}:{b}], s[52:53]")
                            E(f"v_rcp_f32 v{a}, v{a}")
                            E(f"v_rcp_f32 v{b}, v{b}")
                            nop(1)
                            bf16r2(a, b, 6)
                            E(f"v_pk_mul_f32 v[{a}:{b}], v[{a}:{b}], v[{c}:{d}]")
                            E(f"v_cvt_pk_bf16_f32 v{o+2*jj+p}, v{a}, v{b}")
                    nop(2)
                    E(f"v_permlane32_swap_b32 v{o}, v{o+2}")
                    E(f"v_permlane32_swap_b32 v{o+1}, v{o+3}")
                    E(f"buffer_store_dwordx4 v[{o}:{o+3}], v5, s[44:47], s4 offen offset:{t*512}")
                if jp < 1:
                    E(f"s_add_u32 s4, s4, {2*55296}")
            E("s_branch g1_done")
            E("g1_q:")
            srd(44, P_WS, PQ_SIZE, WS_PQ)
            E("s_lshl_b32 s4, s6, 2")
            E("s_add_u32 s4, s4, s11")
            E("s_lshl_b32 s4, s4, 7")
            E("s_sub_u32 s5, s7, 8")
            E("s_lshl_b32 s5, s5, 3")
            E("s_add_u32 s4, s4, s5")
            E("s_lshl_b32 s5, s12, 2")
            E("s_add_u32 s4, s4, s5")
            E("s_mul_i32 s4, s4, 768")
            n = 0
            for j in range(4):
                for t in range(3):
                    o = 8 + 4 * (n & 1)
                    n += 1
                    phi4(ACC + (t * 4 + j) * 4, o)
                    phi4(ACC + ((t + 3) * 4 + j) * 4, o + 2)
                    E(f"buffer_store_dwordx4 v[{o}:{o+3}], v1, s[44:47], s4 offen offset:{t*1024}")
                if j < 3:
                    E("s_add_u32 s4, s4, 24576")
            E("s_branch g1_done")
        else:
            E("s_barrier")
            E("v_add_u32 v5, s13, v3")
            E(f"v_mul_u32_u24 v5, {KP}, v5")
            E("v_lshl_add_u32 v5, v4, 3, v5")
            E("s_cmp_eq_u32 s12, 0")
            E("s_cbranch_scc0 g1_kv_v")
            for wn in range(2):
                if wn:
                    E("g1_kv_v:")
                n = 0
                for j in range(4):
                    for t in range(5):
                        c = KVC[wn][t]
                        o = 8 + 2 * (n & 3)
                        n += 1
                        (phi4 if c < 96 else plain4)(ACC + (t * 4 + j) * 4, o)
                        cb = 2 * c if c < 96 else 160 + 2 * (c - 96)
                        E(f"ds_write_b64 v5, v[{o}:{o+1}] offset:{j*16*KP + cb}")
                if not wn:
                    E("s_branch g1_kv_w")
            E("g1_kv_w:")
            E("s_and_b32 s14, s8, 3")
            E("s_lshr_b32 s15, s8, 2")
            E("v_lshlrev_b32 v5, 3, v4")
            E("v_lshrrev_b32 v6, 2, v3")
            E("v_add_u32 v5, v5, v6")
            E(f"v_mul_u32_u24 v5, {KP}, v5")
            E("v_and_b32 v6, 3, v3")
            E("v_lshl_add_u32 v5, v6, 3, v5")
            E("s_mul_i32 s4, s14, 40")
            E("v_add_u32 v5, s4, v5")
            E("s_lshl_b32 s4, s15, 5")
            E("s_add_u32 s4, s4, 160")
            E("v_add_u32 v6, s4, v5")
            E(f"v_add_u32 v16, {128*KP}, v5")
            E(f"v_add_u32 v17, {128*KP}, v6")
            for r in range(8):
                E(f"v_mov_b32 v{100+r}, 0")
            E("s_cmp_eq_u32 s15, 0")
            E("s_cselect_b32 s4, 16, 4")
            E("v_cmp_gt_u32 s[58:59], s4, v3")
            E("v_mov_b32 v30, 0x3f803f80")
            E("s_lshl_b32 s5, s8, 11")
            E(f"s_add_u32 s5, s5, {256*KP}")
            E("v_mul_u32_u24 v7, 80, v3")
            E("v_lshl_add_u32 v7, v4, 4, v7")
            E("v_add_u32 v7, s5, v7")
            E("v_add_u32 v8, 64, v7")
            E("v_mov_b32 v9, 1280")
            E("v_add_u32 v9, s5, v9")
            E("v_cmp_eq_u32 vcc, 0, v4")
            nop(2)
            E("v_cndmask_b32 v8, v9, v8, vcc")
            E("v_lshl_add_u32 v9, v2, 2, s5")
            E("s_waitcnt lgkmcnt(0)")
            stamp(5)
            E("s_barrier")
            stamp(6)

            def kvreads(ks):
                o = (ks & 3) * 32 * KP
                b0 = 40 + 12 * (ks & 1)
                ak, av = (5, 6) if ks < 4 else (16, 17)
                L = []
                for dt in range(2):
                    L.append(f"ds_read_b64_tr_b16 v[{b0+4*dt}:{b0+1+4*dt}], v{ak} offset:{o + dt*32}")
                    L.append(f"ds_read_b64_tr_b16 v[{b0+2+4*dt}:{b0+3+4*dt}], v{ak} offset:{o + dt*32 + 4*KP}")
                L.append(f"ds_read_b64_tr_b16 v[{b0+8}:{b0+9}], v{av} offset:{o}")
                L.append(f"ds_read_b64_tr_b16 v[{b0+10}:{b0+11}], v{av} offset:{o + 4*KP}")
                return L
            for l in kvreads(0):
                E(l)
            for ks in range(8):
                b0 = 40 + 12 * (ks & 1)
                if ks < 7:
                    for l in kvreads(ks + 1):
                        E(l)
                    E("s_waitcnt lgkmcnt(6)")
                else:
                    E("s_waitcnt lgkmcnt(0)")
                for r in range(4):
                    E(f"v_cndmask_b32 v{b0+8+r}, v30, v{b0+8+r}, s[58:59]")
                nop(2)
                for dt in range(2):
                    a = 100 + dt * 4
                    E(f"v_mfma_f32_16x16x32_bf16 v[{a}:{a+3}], v[{b0+4*dt}:{b0+3+4*dt}], v[{b0+8}:{b0+11}], v[{a}:{a+3}]")
            stamp(7)
            srd(44, P_WS, KVA_SIZE, WS_KVA)
            E("s_lshl_b32 s4, s7, 2")
            E("s_add_u32 s4, s4, s14")
            E("s_lshl_b32 s4, s4, 12")
            E("s_lshl_b32 s5, s15, 11")
            E("s_add_u32 s4, s4, s5")
            E(f"v_mov_b32 v33, {hex(OOB)}")
            for n in range(5):
                E(f"v_add_u32 v31, {64*n}, v2")
                E("v_mul_u32_u24 v32, 205, v31")
                E("v_lshrrev_b32 v32, 12, v32")
                E("v_mul_u32_u24 v34, 20, v32")
                E("v_sub_u32 v34, v31, v34")
                E("v_lshlrev_b32 v32, 7, v32")
                E(f"v_lshl_add_u32 v{10+n}, v34, 2, v32")
                if n == 1:
                    E("v_cmp_gt_u32 vcc, 100, v31")
                    nop(2)
                    E(f"v_cndmask_b32 v15, v33, v{10+n}, vcc")
            nop(4)
            E("ds_write_b128 v7, v[100:103]")
            E("ds_write_b128 v8, v[104:107]")
            E("s_waitcnt lgkmcnt(0)")
            for n in range(5):
                E(f"ds_read_b32 v{20+n}, v9 offset:{256*n}")
            E("s_cmp_eq_u32 s15, 0")
            E("s_cbranch_scc0 g1_kv_e1")
            for n in range(5):
                E(f"s_waitcnt lgkmcnt({4-n})")
                E(f"buffer_atomic_add_f32 v{20+n}, v{10+n}, s[44:47], s4 offen")
            E("s_branch g1_done")
            E("g1_kv_e1:")
            E("s_waitcnt lgkmcnt(0)")
            E("buffer_atomic_add_f32 v20, v10, s[44:47], s4 offen")
            E("buffer_atomic_add_f32 v21, v15, s[44:47], s4 offen")
            E("s_branch g1_done")
    E("g1_pack:")
    E("s_sub_u32 s15, s2, 240")
    E("s_lshl_b32 s15, s15, 3")
    E("s_add_u32 s15, s15, s8")
    E(f"s_mul_i32 s13, s8, {K0_LDSW}")
    E("v_lshrrev_b32 v5, 2, v3")
    E("v_and_b32 v6, 3, v3")
    if STAMP:
        E("s_mov_b32 s66, 1")
    E("g1_pk_loop:")
    if STAMP:
        E("s_memtime s[68:69]")
        E("s_waitcnt lgkmcnt(0)")
        for i in range(1, 6):
            E(f"s_cmp_eq_u32 s66, {i}")
            E(f"s_cselect_b32 s{70+i}, s68, s{70+i}")
        E("s_add_u32 s66, s66, 1")
    E("s_cmp_ge_u32 s15, 440")
    E("s_cbranch_scc1 g1_pk_exit")
    E("s_mov_b32 s4, s15")
    E("s_add_u32 s15, s15, 128")
    E("s_cmp_ge_u32 s4, 280")
    E("s_cbranch_scc1 g1_pk_wo")
    E("v_lshlrev_b32 v7, 3, v6")
    E("s_mul_i32 s5, s4, 6554")
    E("s_lshr_b32 s5, s5, 16")
    E("s_mul_i32 s6, s5, 10")
    E("s_sub_u32 s6, s4, s6")
    E(f"s_mul_i32 s7, s6, {4*57344}")
    E("s_lshl_b32 s9, s5, 11")
    E("s_add_u32 s7, s7, s9")
    srd(40, P_WS, WDP_SIZE, WS_WDP)
    srd(36, P_WD, F * D * 2)
    E("s_lshl_b32 s6, s6, 7")
    E(f"s_mul_i32 s5, s5, {64*1280}")
    E("s_add_u32 s6, s6, s5")
    E("v_lshrrev_b32 v8, 3, v2")
    E("v_and_b32 v9, 7, v2")
    E("v_mul_u32_u24 v10, 1280, v8")
    E("v_lshl_add_u32 v10, v9, 4, v10")
    for q in range(8):
        E(f"buffer_load_dwordx4 v[{20+4*q}:{23+4*q}], v10, s[36:39], s6 offen")
        if q < 7:
            E(f"s_add_u32 s6, s6, {8*1280}")
    E("v_mul_u32_u24 v11, 144, v8")
    E("v_lshl_add_u32 v11, v9, 4, v11")
    E("v_add_u32 v11, s13, v11")
    E("v_lshl_add_u32 v12, v4, 3, v5")
    E("v_mul_u32_u24 v12, 144, v12")
    E("v_add_u32 v12, v12, v7")
    E("v_add_u32 v12, s13, v12")
    for q in range(8):
        E(f"s_waitcnt vmcnt({7-q})")
        E(f"ds_write_b128 v11, v[{20+4*q}:{23+4*q}] offset:{q*1152}")
    E("s_waitcnt lgkmcnt(0)")
    for tc in range(4):
        for kk in range(2):
            r = 60 + 8 * tc + 4 * kk
            for hf in range(2):
                E(f"ds_read_b64_tr_b16 v[{r+2*hf}:{r+2*hf+1}], v12 offset:{kk*32*144 + hf*4*144 + tc*32}")
    for tc in range(4):
        for kk in range(2):
            r = 60 + 8 * tc + 4 * kk
            E(f"s_waitcnt lgkmcnt({14 - 4*tc - 2*kk})")
            E(f"buffer_store_dwordx4 v[{r}:{r+3}], v1, s[40:43], s7 offen offset:{1024*kk}{PKPOL}")
        if tc < 3:
            E("s_add_u32 s7, s7, 57344")
    E("s_branch g1_pk_loop")
    E("g1_pk_wo:")
    E("s_sub_u32 s4, s4, 280")
    E("s_mul_i32 s5, s4, 1639")
    E("s_lshr_b32 s5, s5, 16")
    E("s_mul_i32 s6, s5, 40")
    E("s_sub_u32 s6, s4, s6")
    E("s_lshl_b32 s7, s6, 2")
    E("s_add_u32 s7, s7, s5")
    E("s_mul_i32 s7, s7, 5120")
    srd(40, P_WS, WOP_SIZE, WS_WOP)
    srd(36, P_WO, D * D * 2)
    E("s_lshl_b32 s6, s6, 5")
    E(f"s_mul_i32 s5, s5, {160*1280}")
    E("s_add_u32 s6, s6, s5")
    E("v_lshrrev_b32 v8, 1, v2")
    E("v_and_b32 v9, 1, v2")
    E("v_mul_u32_u24 v10, 1280, v8")
    E("v_lshl_add_u32 v10, v9, 4, v10")
    for q in range(5):
        E(f"buffer_load_dwordx4 v[{20+4*q}:{23+4*q}], v10, s[36:39], s6 offen")
        if q < 4:
            E(f"s_add_u32 s6, s6, {32*1280}")
    E("v_mul_u32_u24 v11, 48, v8")
    E("v_lshl_add_u32 v11, v9, 4, v11")
    E("v_add_u32 v11, s13, v11")
    E("v_lshl_add_u32 v12, v4, 2, v5")
    E("v_mul_u32_u24 v12, 48, v12")
    E("v_lshl_add_u32 v12, v6, 3, v12")
    E("v_add_u32 v12, s13, v12")
    E("v_mul_u32_u24 v13, 20, v4")
    E("v_add_u32 v13, v13, v5")
    E("v_mul_u32_u24 v13, 48, v13")
    E("v_lshl_add_u32 v13, v6, 3, v13")
    E("v_add_u32 v13, s13, v13")
    for q in range(5):
        E(f"s_waitcnt vmcnt({4-q})")
        E(f"ds_write_b128 v11, v[{20+4*q}:{23+4*q}] offset:{q*32*48}")
    E("s_waitcnt lgkmcnt(0)")
    for j in range(5):
        r = 60 + 4 * j
        for hf in range(2):
            if j < 4:
                E(f"ds_read_b64_tr_b16 v[{r+2*hf}:{r+2*hf+1}], v12 offset:{(40*j + 20*hf)*48}")
            else:
                E(f"ds_read_b64_tr_b16 v[{r+2*hf}:{r+2*hf+1}], v13 offset:{(16 + 80*hf)*48}")
    E("s_add_u32 s9, s7, 4096")
    for j in range(5):
        r = 60 + 4 * j
        E(f"s_waitcnt lgkmcnt({8-2*j})")
        if j < 4:
            E(f"buffer_store_dwordx4 v[{r}:{r+3}], v1, s[40:43], s7 offen offset:{1024*j}{PKPOL}")
        else:
            E(f"buffer_store_dwordx4 v[{r}:{r+3}], v1, s[40:43], s9 offen{PKPOL}")
    E("s_branch g1_pk_loop")
    E("g1_pk_exit:")
    if STAMP and "stpk" in XP:
        E("s_waitcnt vmcnt(0)")
        stamp(6)
        E("s_cmp_lg_u32 s8, 0")
        E("s_cbranch_scc1 g1_exit")
        E("s_cmp_ge_u32 s2, 248")
        E("s_cbranch_scc1 g1_exit")
        E("s_sub_u32 s64, s2, 240")
        E("s_lshl_b32 s64, s64, 5")
        srd(80, 32, 256)
        for i in range(8):
            E(f"v_mov_b32 v1, s{70+i}")
            E(f"v_mov_b32 v0, {4*i}")
            E("buffer_store_dword v1, v0, s[80:83], s64 offen")
    if not RTALL:
        E("s_branch g1_exit")
    E("g1_done:")
    if "epi2" in XP:
        E("s_add_u32 s94, s94, 1")
        E("s_cmp_eq_u32 s94, 1")
        E("s_cbranch_scc0 g1_done2")
        E("s_waitcnt vmcnt(0) lgkmcnt(0)")
        E("s_barrier")
        E("s_cmp_lt_u32 s7, 8")
        E("s_cbranch_scc1 g1_qkv_epi")
        E("s_branch g1_gu_epi")
        E("g1_done2:")
    stamp(4)
    if "stpk" not in XP:
        stamp_flush(8)
    rt_end(1)
    E("g1_exit:")
    E("s_endpgm")
    return name, kernel_desc(name, 248)


class VQ:
    def __init__(self):
        self.q = []

    def issue(self, tag):
        self.q.append(tag)

    def wait(self, tag):
        idx = max([i for i, t in enumerate(self.q) if t == tag], default=None)
        if idx is None:
            return
        n = len(self.q) - 1 - idx
        assert n <= 63
        E(f"s_waitcnt vmcnt({n})")
        self.q = self.q[idx + 1:]


class Merger:
    def __init__(self):
        self.vq = VQ()
        self.side = []
        self.block = 0

    def emit(self, it):
        k = it[0]
        if k == "i":
            E(it[1])
        elif k == "ld":
            E(it[1])
            self.vq.issue(it[2])
        elif k == "wait":
            self.vq.wait(it[1])
        else:
            raise ValueError(k)

    def side_some(self, n):
        while n > 0 and self.side and self.block == 0:
            it = self.side.pop(0)
            if it[0] == "gap":
                self.block = it[1]
                continue
            if it[0] == "mark":
                continue
            self.emit(it)
            n -= 1

    def main(self, it, nside):
        self.emit(it)
        if self.block:
            self.block -= 1
        self.side_some(nside)

    def flush_until(self, mark):
        names = [it[1] for it in self.side if it[0] == "mark"]
        if mark not in names:
            return
        while True:
            if self.block:
                nop(self.block)
                self.block = 0
            it = self.side.pop(0)
            if it[0] == "gap":
                self.block = it[1]
                continue
            if it[0] == "mark":
                if it[1] == mark:
                    break
                continue
            self.emit(it)


T_LDS = 163840


def gen_tail():
    name = "g2_kernel"
    kernel_begin(name)
    NWG = 256
    E(f"s_cmp_ge_u32 s2, {NWG}")
    E(f"s_cbranch_scc1 {name}_exit")
    if "half" in XP:
        E("s_bitcmp1_b32 s2, 3")
        E(f"s_cbranch_scc1 {name}_exit")
    if "quarter" in XP:
        E("s_bitcmp1_b32 s2, 4")
        E(f"s_cbranch_scc1 {name}_exit")
    load_ptrs()
    if "rep" in XP:
        E("s_mov_b32 s94, 0")
        E("t_again:")
    E("v_lshrrev_b32 v1, 6, v0")
    E("v_and_b32 v2, 63, v0")
    E("v_readfirstlane_b32 s8, v1")
    E("v_and_b32 v3, 15, v2")
    E("v_lshrrev_b32 v4, 4, v2")
    E("v_lshlrev_b32 v1, 4, v2")
    E("s_bfe_u32 s7, s2, 0x30003")
    E("s_and_b32 s6, s2, 7")
    E("s_lshl_b32 s6, s6, 2")
    E("s_lshr_b32 s4, s2, 6")
    E("s_add_u32 s6, s6, s4")
    AV, BV, WV = 10, 14, 19
    for j in range(4):
        E(f"v_add_u32 v{AV+j}, {55296*j}, v1")
    for t in range(5):
        E(f"v_add_u32 v{BV+t}, {57344*t}, v1")
    for t in range(5):
        E(f"v_add_u32 v{WV+t}, {20480*t}, v1")
    E("s_lshl_b32 s4, s8, 10")
    E(f"s_mul_i32 s10, s6, {4*55296}")
    E("s_add_u32 s10, s10, s4")
    E(f"s_mul_i32 s11, s7, {5*57344}")
    E("s_add_u32 s11, s11, s4")
    E("s_mov_b32 s65, 4096")
    E("s_and_b32 s4, s6, 3")
    E("s_lshl_b32 s9, s7, 1")
    E("s_add_u32 s9, s9, s4")
    E("s_sub_u32 s4, s9, 14")
    E("s_cmp_ge_u32 s9, 14")
    E("s_cselect_b32 s9, s4, s9")
    if "rot" not in XP:
        E("s_mov_b32 s9, 0")
    E("s_lshl_b32 s4, s9, 12")
    E("s_add_u32 s10, s10, s4")
    E("s_add_u32 s11, s11, s4")
    E(f"s_mul_i32 s12, s7, {5*20480}")
    E("s_mul_i32 s4, s8, 5120")
    E("s_add_u32 s12, s12, s4")
    E("s_waitcnt lgkmcnt(0)")
    stamp(0)
    srd(36, P_WS, S * F * 2, WS_H)
    srd(40, P_WS, WDP_SIZE, WS_WDP)
    srd(44, P_WS, WOP_SIZE, WS_WOP)
    srd(48, P_WS, KVA_SIZE, WS_KVA)
    srd(52, P_WS, PQ_SIZE, WS_PQ)
    srd(84, P_WS, WS_END)

    T0V, T1V, ZV, PQV = 24, 25, 29, 30
    KVF, PQF0, R0, ZR, DD, OF, OF4, RSEL = 32, 44, 76, 92, 108, 124, 140, 156
    RAW = R0
    NV = 232
    ACCB, ACCS = 0, 80

    RG = 6 if "ring6" in XP else 4

    def slot(n):
        s = n % RG
        if s >= 4:
            return ("a", 36 * (s - 4))
        return ("a", 160 + 36 * s) if s < 2 else ("v", 160 + 36 * (s - 2))

    order = "DDDWDDDWDDDWDDDWDDW"
    mg = Merger()

    def loads(n):
        p, b = slot(n)
        L = []
        if order[n] == "D":
            for j in range(4):
                r = b + 4 * j
                L.append(("ld", f"buffer_load_dwordx4 {p}[{r}:{r+3}], v{AV+j}, s[36:39], s10 offen", ("m", n)))
            for t in range(5):
                r = b + 16 + 4 * t
                L.append(("ld", f"buffer_load_dwordx4 {p}[{r}:{r+3}], v{BV+t}, s[40:43], s11 offen", ("m", n)))
            L.append(("i", "\n    ".join(["s_add_u32 s9, s9, 1", "s_cmp_eq_u32 s9, 14",
                                         f"s_cselect_b32 s64, {-13*4096 & 0xffffffff}, s65",
                                         "s_cselect_b32 s9, 0, s9", "s_add_u32 s10, s10, s64",
                                         "s_add_u32 s11, s11, s64"])))
        else:
            for t in range(5):
                r = b + 16 + 4 * t
                L.append(("ld", f"buffer_load_dwordx4 {p}[{r}:{r+3}], v{WV+t}, s[44:47], s12 offen", ("m", n)))
            L.append(("i", "s_add_u32 s12, s12, 1024"))
        return L

    E(f"v_mov_b32 v9, {hex(OOB)}")
    E("v_cmp_gt_u32 vcc, 3, v4")
    E("s_mul_i32 s13, s8, 40960")
    E("s_lshl_b32 s14, s8, 15")
    E(f"v_cndmask_b32 v{PQV}, v9, v1, vcc")
    E("s_lshl_b32 s15, s6, 4")
    E("s_add_u32 s15, s15, s8")
    E(f"s_mul_i32 s15, s15, {8*768}")
    PFV = 31
    E("s_lshr_b32 s4, s2, 3")
    E("s_lshl_b32 s5, s4, 1")
    E("v_lshrrev_b32 v5, 5, v2")
    E("v_add_u32 v5, s5, v5")
    E("v_and_b32 v6, 31, v2")
    E("v_lshlrev_b32 v6, 7, v6")
    E("s_and_b32 s5, s2, 7")
    E("s_lshl_b32 s5, s5, 4")
    E("v_add_u32 v7, s5, v5")
    E("v_mul_u32_u24 v7, 55296, v7")
    E(f"v_add_u32 v7, {WS_H}, v7")
    E("v_subrev_u32 v8, 16, v5")
    E("v_mul_u32_u24 v8, 57344, v8")
    E(f"v_add_u32 v8, {WS_WDP}, v8")
    E("v_cmp_gt_u32 vcc, 16, v5")
    E("v_cmp_gt_u32 s[56:57], 56, v5")
    nop(1)
    E("v_cndmask_b32 v7, v8, v7, vcc")
    E("v_add_u32 v7, v7, v6")
    E(f"v_cndmask_b32 v{PFV}, v9, v7, s[56:57]")
    E("s_lshl_b32 s66, s8, 12")
    E("s_lshl_b32 s5, s4, 2")
    E("s_add_u32 s5, s5, s8")
    E("s_mul_i32 s4, s5, 6400")
    E(f"s_add_u32 s4, s4, {WS_WOP}")
    E("v_lshlrev_b32 v7, 7, v2")
    E("v_add_u32 v5, s4, v7")
    E("v_cmp_gt_u32 vcc, 50, v2")
    E("s_mul_i32 s5, s5, 3072")
    E("s_and_b32 s4, s2, 7")
    E(f"s_mul_i32 s4, s4, {16*32*768}")
    E("s_add_u32 s4, s4, s5")
    E(f"s_add_u32 s4, s4, {WS_PQ}")
    E("v_cndmask_b32 v5, v9, v5, vcc")
    E("v_add_u32 v6, s4, v7")
    E("v_cmp_gt_u32 vcc, 24, v2")
    nop(2)
    E("v_cndmask_b32 v6, v9, v6, vcc")

    def pf(blk):
        if "pf" not in XP:
            return []
        return [("i", f"s_add_u32 s67, s66, {blk*4096}"),
                ("ld", f"buffer_load_dword v0, v{PFV}, s[84:87], s67 offen", ("p", blk))]

    def kvdma(n):
        L = []
        for p in range(3):
            L.append(("i", f"s_add_u32 m0, s13, {n*3072 + p*1024}"))
            L.append(("i", f"s_add_u32 s4, s14, {n*4096 + p*1024}"))
            L.append(("ld", f"buffer_load_dwordx4 v1, s[48:51], s4 offen lds", ("k", n)))
        return L

    def oloads(n):
        L = []
        PQF = PQF0 + 16 * (n & 1)
        for rb in range(4):
            L.append(("i", f"s_add_u32 s5, s15, {n*768 + rb*24576}"))
            L.append(("ld", f"buffer_load_dwordx4 v[{PQF+4*rb}:{PQF+4*rb+3}], v{PQV}, s[52:55], s5 offen", ("o", n)))
        return L

    PFX = [] if "pf" not in XP else [("ld", "buffer_load_dword v0, v5, s[84:87], 0 offen", ("p", 0)),
                                   ("ld", "buffer_load_dword v0, v6, s[84:87], 0 offen", ("p", 0))]
    for it in loads(0) + kvdma(0) + oloads(0) + kvdma(1) + oloads(1) + sum([loads(k) for k in range(1, RG - 1)], []) + pf(3) + PFX:
        mg.emit(it)
    for n in range(2, 8):
        for it in (kvdma(n) if "nokv" not in XP else []):
            mg.emit(it)
    stamp(1)
    E("v_lshlrev_b32 v5, 5, v4")
    E("v_add_u32 v5, s13, v5")
    E(f"v_lshl_add_u32 v{T0V}, v3, 7, v5")
    E("v_mov_b32 v7, 23")
    for q in range(4):
        E(f"v_subrev_u32 v6, {4*q}, v3")
        E("v_cmp_gt_u32 vcc, 4, v6")
        E("v_add_u32 v6, 16, v6")
        nop(1)
        E("v_cndmask_b32 v6, v7, v6, vcc")
        E(f"v_lshl_add_u32 v{T1V+q}, v6, 7, v5")
        E(f"v_cmp_eq_u32 s[{56+2*q}:{57+2*q}], {q}, v4")
    E(f"v_add_u32 v{ZV}, {20*128}, v5")
    for r in range(160):
        E(f"v_accvgpr_write_b32 a{r}, 0")

    def I(s):
        return ("i", s)

    def r2(a, b, tmp):
        return [I(f"v_cvt_pk_bf16_f32 v{tmp}, v{a}, v{b}"), I(f"v_lshlrev_b32 v{a}, 16, v{tmp}"),
                I(f"v_and_b32 v{b}, 0xffff0000, v{tmp}")]

    side = []
    for n in range(8):
        PQF = PQF0 + 16 * (n & 1)
        side.append(("wait", ("k", n)))
        for m, a in enumerate((T0V, T1V + (n & 3), ZV)):
            for hf in range(2):
                r = RAW + 8 * m + 4 * hf
                side.append(I(f"ds_read_b128 v[{r}:{r+3}], v{a} offset:{n*3072 + 16*hf}"))
        side.append(("gap", 5))
        side.append(I("s_waitcnt lgkmcnt(0)"))
        for r in range(12):
            side.append(I(f"v_cvt_pk_bf16_f32 v{KVF+r}, v{RAW+2*r}, v{RAW+2*r+1}"))
        side.append(("wait", ("o", n)))
        side.append(I("s_nop 1"))
        for rb in range(4):
            pq = f"v[{PQF+4*rb}:{PQF+4*rb+3}]"
            side.append(I(f"v_mfma_f32_16x16x32_bf16 v[{ZR+4*rb}:{ZR+4*rb+3}], v[{KVF+8}:{KVF+11}], {pq}, 0"))
            side.append(I(f"v_mfma_f32_16x16x32_bf16 v[{R0+4*rb}:{R0+4*rb+3}], v[{KVF}:{KVF+3}], {pq}, 0"))
            c = "0" if (n & 3) == 0 else f"v[{DD+4*rb}:{DD+4*rb+3}]"
            side.append(I(f"v_mfma_f32_16x16x32_bf16 v[{DD+4*rb}:{DD+4*rb+3}], v[{KVF+4}:{KVF+7}], {pq}, {c}"))
        if n < 6:
            side += oloads(n + 2)
        side.append(("gap", 9))
        for pr in range(2):
            z0, z1 = ZR + 8 * pr, ZR + 8 * pr + 4
            side += r2(z0, z1, 6)
            side.append(I(f"v_add_f32 v{z0}, {hex(EPS6)}, v{z0}"))
            side.append(I(f"v_add_f32 v{z1}, {hex(EPS6)}, v{z1}"))
            side += r2(z0, z1, 6)
            side.append(I(f"v_rcp_f32 v{z0}, v{z0}"))
            side.append(I(f"v_rcp_f32 v{z1}, v{z1}"))
        for rb in range(4):
            z = ZR + 4 * rb
            for p in range(2):
                a = R0 + 4 * rb + 2 * p
                side += r2(a, a + 1, 6 + p)
                side.append(I(f"v_pk_mul_f32 v[{a}:{a+1}], v[{a}:{a+1}], v[{z}:{z+1}] op_sel:[0,0] op_sel_hi:[1,0]"))
                side.append(I(f"v_cvt_pk_bf16_f32 v{OF + 4*rb + 2*(n&1) + p}, v{a}, v{a+1}"))
            q = n & 3
            if q == 0:
                side.append(I(f"v_mov_b32 v{RSEL+rb}, v{z}"))
            else:
                side.append(I(f"v_cndmask_b32 v{RSEL+rb}, v{RSEL+rb}, v{z}, s[{56+2*q}:{57+2*q}]"))
        if (n & 3) == 3:
            for rb in range(4):
                for p in range(2):
                    a = DD + 4 * rb + 2 * p
                    side += r2(a, a + 1, 6 + p)
                    side.append(I(f"v_mul_f32 v{a}, v{a}, v{RSEL+rb}"))
                    side.append(I(f"v_mul_f32 v{a+1}, v{a+1}, v{RSEL+rb}"))
                    side.append(I(f"v_cvt_pk_bf16_f32 v{OF4 + 4*rb + 2*(n>>2) + p}, v{a}, v{a+1}"))
        if n & 1:
            side.append(("mark", n >> 1))
    if "tnoside" in XP:
        side = []
    mg.side = side

    NST = len(order)
    wi = 0
    for n in range(NST):
        p, b = slot(n)
        if order[n] == "W":
            mg.flush_until(min(wi, 3))
            nop(2)
        mg.emit(("wait", ("m", n)))
        if n == 0:
            stamp(2)
        L = loads(n + RG - 1) if n + RG - 1 < NST else []
        if n == 1:
            L += pf(7)
        if n == 5:
            L += pf(11)
        M = []
        for t in range(5):
            for j in range(4):
                w = f"{p}[{b+16+4*t}:{b+19+4*t}]"
                if order[n] == "D":
                    a = ACCB + (j * 5 + t) * 4
                    x = f"{p}[{b+4*j}:{b+4*j+3}]"
                else:
                    a = ACCS + (j * 5 + t) * 4
                    xo = (OF if wi < 4 else OF4) + 4 * j
                    x = f"v[{xo}:{xo+3}]"
                M.append(I(f"v_mfma_f32_16x16x32_bf16 a[{a}:{a+3}], {w}, {x}, a[{a}:{a+3}]"))
        ns = 0 if order[n] == "W" else 3
        if "tnomfma" in XP:
            M = [I("s_nop 0") for _ in M]
        for k, m in enumerate(M):
            mg.main(m, ns)
            if k % 2 == 1 and L:
                mg.main(L.pop(0), 0)
        while L:
            mg.main(L.pop(0), 0)
        if order[n] == "W":
            wi += 1
    assert not [it for it in mg.side if it[0] in ("i", "ld")]
    nop(10)
    stamp(3)
    if "rep" in XP:
        E("s_waitcnt vmcnt(0) lgkmcnt(0)")
        E("s_barrier")
        E("s_add_u32 s94, s94, 1")
        E("s_cmp_eq_u32 s94, 1")
        E("v_mbcnt_lo_u32_b32 v0, -1, 0")
        E("v_mbcnt_hi_u32_b32 v0, -1, v0")
        E("v_lshl_add_u32 v0, s8, 6, v0")
        E("s_cbranch_scc1 t_again")
        E("t_cont:")
    srd(44, P_X, S * D * 2)
    srd(48, P_OUT, S * D * 2)
    E("s_lshl_b32 s4, s6, 6")
    E("s_lshl_b32 s5, s8, 4")
    E("s_add_u32 s4, s4, s5")
    E("v_add_u32 v7, s4, v3")
    E("v_mul_u32_u24 v7, 1280, v7")
    E("v_lshl_add_u32 v7, v4, 3, v7")
    E("s_mul_i32 s4, s7, 160")
    E("v_add_u32 v7, s4, v7")
    for t in range(5):
        E(f"buffer_load_dwordx2 v[{10+2*t}:{11+2*t}], v7, s[44:47], 0 offen offset:{32*t}")
    E("s_mul_i32 s4, s8, 40960")
    E("v_add_u32 v6, s4, v1")
    for w in range(4):
        lab = f"{name}_w{w}"
        E(f"s_cmp_eq_u32 s8, {w}")
        E(f"s_cbranch_scc1 {lab}")
        for gm in range(2):
            for t in range(5):
                a = (ACCB, ACCS)[gm] + (w * 5 + t) * 4
                E(f"ds_write_b128 v6, a[{a}:{a+3}] offset:{(gm*20 + w*5 + t)*1024}")
        E(f"{lab}:")
    for w in range(4):
        lab = f"{name}_o{w}"
        E(f"s_cmp_lg_u32 s8, {w}")
        E(f"s_cbranch_scc1 {lab}")
        for gm in range(2):
            for r in range(20):
                E(f"v_accvgpr_read_b32 v{30+20*gm+r}, a{(ACCB, ACCS)[gm] + w*20 + r}")
        E(f"{lab}:")
    E("s_waitcnt lgkmcnt(0)")
    E("s_barrier")
    E("s_mul_i32 s5, s8, 5120")
    for d in range(1, 4):
        E(f"s_add_u32 s4, s8, {d}")
        E("s_and_b32 s4, s4, 3")
        E("s_mul_i32 s4, s4, 40960")
        E("s_add_u32 s4, s4, s5")
        E(f"v_add_u32 v{20+d}, s4, v1")
    for d in range(1, 4):
        for gm in range(2):
            for t in range(5):
                r = 70 + ((d - 1) * 10 + gm * 5 + t) * 4
                E(f"ds_read_b128 v[{r}:{r+3}], v{20+d} offset:{(gm*20 + t)*1024}")
    E(f"s_mov_b32 s50, {hex(LOG2E ^ 0x80000000)}")
    E("s_waitcnt lgkmcnt(0) vmcnt(0)")
    for r in range(40):
        E(f"v_add_f32 v{70+r}, v{70+r}, v{110+r}")
        E(f"v_add_f32 v{30+r}, v{30+r}, v{150+r}")
    for r in range(40):
        E(f"v_add_f32 v{30+r}, v{30+r}, v{70+r}")
    for t in range(5):
        bb = 30 + 4 * t
        ss = 50 + 4 * t
        for p in range(2):
            x, y = bb + 2 * p, bb + 2 * p + 1
            a, b = ss + 2 * p, ss + 2 * p + 1
            bf16r2(x, y, 6)
            for r, tt in ((x, 8), (y, 9)):
                E(f"v_mul_f32 v{tt}, s50, v{r}")
                E(f"v_exp_f32 v{tt}, v{tt}")
            bf16r2(a, b, 6)
            for r, tt in ((x, 8), (y, 9)):
                E(f"v_add_f32 v{tt}, 1.0, v{tt}")
                E(f"v_rcp_f32 v{tt}, v{tt}")
            nop(1)
            E(f"v_mul_f32 v{x}, v{x}, v8")
            E(f"v_mul_f32 v{y}, v{y}, v9")
            bf16r2(x, y, 6)
            E(f"v_mul_f32 v{a}, v{a}, v{x}")
            E(f"v_mul_f32 v{b}, v{b}, v{y}")
            bf16r2(a, b, 6)
            xq = 10 + 2 * t + p
            E(f"v_lshlrev_b32 v8, 16, v{xq}")
            E(f"v_and_b32 v9, 0xffff0000, v{xq}")
            E(f"v_add_f32 v{a}, v{a}, v8")
            E(f"v_add_f32 v{b}, v{b}, v9")
            E(f"v_cvt_pk_bf16_f32 v{24+p}, v{a}, v{b}")
        E(f"buffer_store_dwordx2 v[24:25], v7, s[48:51], 0 offen offset:{32*t}")
        nop(1)
    stamp(4)
    stamp_flush(5)
    rt_end(2)
    E(f"{name}_exit:")
    E("s_endpgm")
    return name, kernel_desc(name, NV, 232)


def main():
    hdr = open("cdna_kernels/%s.s.ref" % NAME).read().split("\n")
    top = [l for l in hdr if l.startswith(";") and "@launch" not in l]
    launches = [
        ("k0_kernel", K0_N, 256, 0),
        ("g1_kernel", 256, 512, RING1 * STG1),
        ("g2_kernel", 256, 256, T_LDS),
    ]
    if "twice" in XP:
        launches.append(launches[-1])
    top += [f"; @launch kernel={k} grid=({g},1,1) block=({b},1,1) lds={l}" for k, g, b, l in launches]
    E('.amdgcn_target "amdgcn-amd-amdhsa--gfx950"')
    E(".text")
    descs = []
    descs.append(gen_k0())
    descs.append(gen_g1())
    descs.append(gen_tail())
    E('.section .rodata,"a"')
    body = "\n".join(top) + "\n" + "\n".join(out) + "\n" + "".join(d for _, d in descs)
    open(os.environ.get("OUT", "cdna_kernels/%s.s" % NAME), "w").write(body)


if __name__ == "__main__":
    main()
```
